```python
import torch

def _softmax(x, axis=-1):
    return torch.softmax(x, dim=axis)
def _gelu(x):
    return torch.nn.functional.gelu(x, approximate="tanh")
def _silu(x):
    return torch.nn.functional.silu(x)
def _sigmoid(x):
    return torch.sigmoid(x)
def _layernorm(x, axis=-1, eps=1e-5):
    m = x.mean(dim=axis, keepdim=True)
    v = x.var(dim=axis, keepdim=True, unbiased=False)
    return (x - m) / torch.sqrt(v + eps)
def _scatter_add(tgt, idx, src, axis=0):
    return tgt.clone().index_add_(axis, idx, src)
def _segment_sum(src, seg, n):
    out = torch.zeros((n,) + src.shape[1:], dtype=src.dtype)
    return out.index_add_(0, seg, src)
def _pad(x, pw):
    flat = tuple(v for pair in reversed(pw) for v in pair)
    return torch.nn.functional.pad(x, flat)

kernel_name = 'sequential_preLN__sliding_block_cached__glu_gated_bilinear__decode'

def setup_inputs():

    _w = (lambda a: (lambda t: t.to(torch.bfloat16) if t.is_floating_point() else t)(torch.as_tensor(a)))
    def _A_setup():
        B, Sq, D = 1, 1, 576
        Hq, Hkv, Sk, Dh = 32, 16, 65536, 128
        assert Hq % Hkv == 0, (Hq, Hkv)
        return {
            "x": _w((lambda *s: torch.randn(*s, dtype=torch.bfloat16) * 0.05)(B, Sq, D)),
            "k_cache": _w((lambda *s: torch.randn(*s, dtype=torch.bfloat16) * 1.6)(B, Hkv, Sk, Dh)),
            "v_cache": _w((lambda *s: torch.randn(*s, dtype=torch.bfloat16) * 0.8)(B, Hkv, Sk, Dh)),
            "wq": _w((lambda *s: torch.randn(*s, dtype=torch.bfloat16) * 1.6)(D, Hq * Dh) * (D ** -0.5)),
            "wo": _w((lambda *s: torch.randn(*s, dtype=torch.bfloat16) * 0.8)(Hq * Dh, D) * ((Hq * Dh) ** -0.5)),
        }
    _A_in = _A_setup()

    def _B_setup():
        B, S, D, F = 1, 1, 576, 4608
        return {
            "x": _w((lambda *s: torch.randn(*s, dtype=torch.bfloat16) * 0.05)(B, S, D)),
            "w_gate": _w((lambda *s: torch.randn(*s, dtype=torch.bfloat16) * 0.4)(D, F) * (D ** -0.5)),
            "w_up": _w((lambda *s: torch.randn(*s, dtype=torch.bfloat16) * 0.4)(D, F) * (D ** -0.5)),
            "w_down": _w((lambda *s: torch.randn(*s, dtype=torch.bfloat16) * 0.4)(F, D) * (F ** -0.5)),
        }
    _B_in = _B_setup()

    return {
        "A_x": _A_in["x"],
        "A_k_cache": _A_in["k_cache"],
        "A_v_cache": _A_in["v_cache"],
        "A_wq": _A_in["wq"],
        "A_wo": _A_in["wo"],
        "B_x": _B_in["x"],
        "B_w_gate": _B_in["w_gate"],
        "B_w_up": _B_in["w_up"],
        "B_w_down": _B_in["w_down"],
    }

def reference(A_x, A_k_cache, A_v_cache, A_wq, A_wo, B_x, B_w_gate, B_w_up, B_w_down):
    def _A_ref(x, k_cache, v_cache, wq, wo):
        B, Sq, D = x.shape
        Hq, Dh = 32, 128
        Hkv, Sk = k_cache.shape[1], k_cache.shape[2]
        W = min(4096, max(256, Sk // 4))
        rep = Hq // Hkv
        q = (lambda x, *d: x.permute(*d))((x @ wq).reshape(B, Sq, Hq, Dh), 0, 2, 1, 3)
        k = (lambda x, n, axis: torch.repeat_interleave(x, n, dim=axis))(k_cache[:, :, Sk - W:, :], rep, axis=1)
        v = (lambda x, n, axis: torch.repeat_interleave(x, n, dim=axis))(v_cache[:, :, Sk - W:, :], rep, axis=1)
        scores = torch.einsum("bhqd,bhkd->bhqk", q, k) * (Dh ** -0.5)
        p = _softmax(scores, axis=-1)
        o = torch.einsum("bhqk,bhkd->bhqd", p, v)
        return (lambda x, *d: x.permute(*d))(o, 0, 2, 1, 3).reshape(B, Sq, Hq * Dh) @ wo

    def _B_ref(x, w_gate, w_up, w_down):
        g = torch.einsum("bsd,df->bsf", x, w_gate)
        u = torch.einsum("bsd,df->bsf", x, w_up)
        h = g * u
        return torch.einsum("bsf,fd->bsd", h, w_down)

    x = A_x
    h = x + _A_ref(_layernorm(x, axis=-1), A_k_cache, A_v_cache, A_wq, A_wo)
    h2 = h + _B_ref(_layernorm(h, axis=-1), B_w_gate, B_w_up, B_w_down)
    return h2
```

```python
import re

TRANS = ("v_exp_f32", "v_log_f32", "v_rcp_f32", "v_rsq_f32", "v_sqrt_f32", "v_sin_f32", "v_cos_f32", "v_rcp_iflag_f32")

def expand(tok):
    tok = tok.strip()
    if tok.startswith("-"): tok = tok[1:]
    m = re.fullmatch(r"abs\((.*)\)", tok)
    if m: tok = m.group(1)
    if tok.startswith("|") and tok.endswith("|"): tok = tok[1:-1]
    m = re.fullmatch(r"([vsa])(\d+)", tok)
    if m: return [(m.group(1), int(m.group(2)))]
    m = re.fullmatch(r"([vsa])\[(\d+):(\d+)\]", tok)
    if m: return [(m.group(1), i) for i in range(int(m.group(2)), int(m.group(3)) + 1)]
    if tok == "vcc": return [("s", "vcc_lo"), ("s", "vcc_hi")]
    if tok in ("vcc_lo", "vcc_hi"): return [("s", tok)]
    if tok == "exec": return [("s", "exec_lo"), ("s", "exec_hi")]
    if tok in ("exec_lo", "exec_hi"): return [("s", tok)]
    if tok == "m0": return [("s", "m0")]
    return []

class Ins:
    __slots__ = ("text", "mn", "cls", "vw", "vr", "sw", "sr", "dpp", "trans", "sdwa", "mfma_passes", "mD", "mA", "mB", "mC", "wide_store", "perm", "lane_rd", "lanesel")
    def __init__(self, text):
        self.text = text
        t = text.split(";")[0].strip()
        parts = t.split(None, 1)
        mn = parts[0]
        rest = parts[1] if len(parts) > 1 else ""
        ops = [o.strip() for o in rest.split(",")] if rest else []
        ops2 = []
        for o in ops:
            ops2.append(o.split()[0] if o.split() else o)
        ops = ops2
        self.mn = mn
        self.vw = set(); self.vr = set(); self.sw = set(); self.sr = set()
        self.dpp = bool(re.search(r"quad_perm|row_shl|row_shr|row_ror|row_mirror|row_half_mirror|row_bcast|wave_shl|wave_shr|wave_rol|wave_ror", t))
        self.sdwa = ("_sdwa" in mn) or ("src0_sel" in t) or ("dst_sel" in t)
        base = re.sub(r"_(e32|e64|dpp|sdwa)$", "", mn)
        self.trans = base in TRANS
        self.mfma_passes = 0
        self.mD = self.mA = self.mB = self.mC = set()
        self.wide_store = False
        self.perm = False
        self.lane_rd = False
        self.lanesel = set()
        def V(regs): return set(r for r in regs if r[0] in "va")
        def S(regs): return set(r for r in regs if r[0] == "s")
        def rd(tok):
            e = expand(tok); self.vr |= V(e); self.sr |= S(e)
        def wr(tok):
            e = expand(tok); self.vw |= V(e); self.sw |= S(e)
        if mn.startswith("v_mfma"):
            self.cls = "MFMA"
            self.mD = set(expand(ops[0])); self.mA = set(expand(ops[1])); self.mB = set(expand(ops[2])); self.mC = set(expand(ops[3]))
            if "16x16x32" in mn or "16x16x16" in mn: self.mfma_passes = 4
            elif "32x32x16" in mn or "32x32x8" in mn: self.mfma_passes = 8
            elif "4x4x4" in mn: self.mfma_passes = 2
            else: raise ValueError("unknown mfma " + mn)
            self.vw = set(self.mD); self.vr = self.mA | self.mB | self.mC
        elif mn.startswith("v_"):
            self.cls = "VALU"
            if base.startswith("v_cmp"):
                wr(ops[0])
                for o in ops[1:]: rd(o)
                if base.startswith("v_cmpx"): wr("exec")
            elif base in ("v_readfirstlane_b32", "v_readlane_b32"):
                wr(ops[0]); rd(ops[1]); self.lane_rd = True
                if len(ops) > 2: rd(ops[2]); self.lanesel = set(expand(ops[2]))
            elif base == "v_writelane_b32":
                wr(ops[0]); rd(ops[0]); rd(ops[1])
                if len(ops) > 2: rd(ops[2]); self.lanesel = set(expand(ops[2]))
            elif base in ("v_permlane32_swap_b32", "v_permlane16_swap_b32"):
                for o in ops[:2]: rd(o); wr(o)
                self.perm = True
            elif base in ("v_add_co_u32", "v_sub_co_u32", "v_subrev_co_u32"):
                wr(ops[0]); wr(ops[1]); rd(ops[2]); rd(ops[3])
            elif base in ("v_addc_co_u32", "v_subb_co_u32"):
                wr(ops[0]); wr(ops[1]); rd(ops[2]); rd(ops[3]); rd(ops[4])
            else:
                wr(ops[0])
                for o in ops[1:]: rd(o)
                if base in ("v_fmac_f32", "v_dot2c_f32_bf16", "v_pk_fmac_f16", "v_mac_f32"): rd(ops[0])
                if base == "v_cndmask_b32" and len(ops) == 3: rd("vcc")
                if self.dpp or self.sdwa: rd(ops[0])
        elif mn.startswith("buffer_") or mn.startswith("global_") or mn.startswith("flat_"):
            self.cls = "VMEM"
            isload = "_load_" in mn
            isstore = "_store_" in mn
            isatomic = "_atomic_" in mn
            if mn.startswith("buffer_"):
                if mn.startswith("buffer_inv") or mn.startswith("buffer_wbl2"):
                    pass
                elif isload and " lds" in t:
                    for o in ops: rd(o)
                elif isload:
                    wr(ops[0])
                    for o in ops[1:]: rd(o)
                else:
                    for o in ops: rd(o)
                    if isatomic and "sc0" in t: wr(ops[0])
                if isstore and ("x4" in mn or "x3" in mn): self.wide_store = set(expand(ops[0]))
            else:
                if isload:
                    wr(ops[0])
                    for o in ops[1:]: rd(o)
                elif isstore:
                    for o in ops: rd(o)
                    if "x4" in mn or "x3" in mn: self.wide_store = set(expand(ops[1]))
                else:
                    if "sc0" in t:
                        wr(ops[0])
                        for o in ops[1:]: rd(o)
                    else:
                        for o in ops: rd(o)
        elif mn.startswith("ds_"):
            self.cls = "DS"
            if mn.startswith("ds_read") or "_rtn_" in mn or mn.startswith("ds_bpermute") or mn.startswith("ds_permute") or mn.startswith("ds_swizzle"):
                wr(ops[0])
                for o in ops[1:]: rd(o)
            else:
                for o in ops: rd(o)
        elif mn.startswith("s_load") or mn.startswith("s_buffer_load") or mn.startswith("s_mem") or mn.startswith("s_atomic"):
            self.cls = "SMEM"
            wr(ops[0])
            for o in ops[1:]: rd(o)
        elif mn.startswith("s_"):
            self.cls = "SALU"
            if mn in ("s_nop", "s_waitcnt", "s_barrier", "s_endpgm", "s_sleep", "s_setprio", "s_branch") or mn.startswith("s_cbranch"):
                pass
            elif mn.startswith("s_cmp") or mn.startswith("s_bitcmp"):
                for o in ops: rd(o)
            else:
                wr(ops[0])
                for o in ops[1:]: rd(o)
                if "saveexec" in mn: wr("exec"); rd("exec")
        else:
            raise ValueError("unknown instr: " + text)

MFMA_D_VALU = {2: 5, 4: 8, 8: 12}
MFMA_D_AB = {2: 5, 4: 8, 8: 12}
MFMA_D_COVL = {2: 4, 4: 6, 8: 10}
MFMA_D_CSAME = {2: 2, 4: 0, 8: 0}
MFMA_C_WAR = {2: 1, 4: 3, 8: 7}

class Asm:
    def __init__(self):
        self.lines = []
        self.hist = []
        self.nops = 0
        self.vm = []
        self.ds = []
    def raw(self, s):
        self.lines.append(s)
    def comment(self, s):
        self.lines.append("; " + s)
    def label(self, name, keep=True):
        self.lines.append(name + ":")
        if not keep: self.hist = []
    def _need(self, c):
        need = 0
        why = None
        for (p, d) in self.hist:
            req = 0
            if p.cls == "VALU":
                if c.cls == "VALU" and c.lane_rd and (p.vw & c.vr): req = max(req, 1)
                if c.cls == "VALU" and c.dpp and (p.vw & c.vr): req = max(req, 2)
                if c.cls == "VALU" and c.perm and (p.vw & c.vr): req = max(req, 2)
                if c.cls == "VALU" and (p.sw & c.sr):
                    req = max(req, 2)
                    if p.sw & c.lanesel: req = max(req, 4)
                if c.cls == "VMEM" and (p.sw & c.sr): req = max(req, 5)
                if p.trans and c.cls in ("VALU", "MFMA") and (p.vw & c.vr) : req = max(req, 1)
                if p.sdwa and c.cls == "VALU" and (p.vw & (c.vr | c.vw)): req = max(req, 1)
                if c.cls == "MFMA" and (p.vw & c.vr): req = max(req, 2)
                if ("s", "exec_lo") in p.sw:
                    if c.cls == "VALU" and c.dpp: req = max(req, 5)
                    if c.cls == "MFMA": req = max(req, 4)
                    if c.cls == "VALU" and (c.lane_rd or c.perm): req = max(req, 4)
            if p.cls == "MFMA":
                n = p.mfma_passes
                if c.cls == "MFMA":
                    if p.mD & (c.mA | c.mB): req = max(req, MFMA_D_AB[n])
                    if p.mD & c.mC:
                        if p.mD == c.mC and c.mfma_passes == n: req = max(req, MFMA_D_CSAME[n])
                        else: req = max(req, MFMA_D_COVL[n])
                    if (p.mD & c.mD) and not (p.mD & c.mC): req = max(req, MFMA_D_COVL[n])
                else:
                    if c.cls in ("VALU", "VMEM", "DS") and (p.mD & (c.vr | c.vw)): req = max(req, MFMA_D_VALU[n])
                    if c.cls == "VALU" and (p.mC & c.vw): req = max(req, MFMA_C_WAR[n])
            if p.cls == "VMEM" and p.wide_store and c.cls in ("VALU", "VMEM", "DS", "MFMA") and (p.wide_store & c.vw):
                req = max(req, 2)
            if p.cls == "SALU" and ("s", "m0") in p.sw and c.cls in ("VMEM", "DS"):
                req = max(req, 1)
            if req - d > need:
                need = req - d; why = p.text
        return need, why
    def _push(self, ins, states=1):
        self.hist = [(p, d + states) for (p, d) in self.hist if d + states < 24]
        if ins is not None: self.hist.append((ins, 0))
    def __call__(self, text):
        for ln in text.split("\n"):
            ln = ln.strip()
            if not ln: continue
            if ln.startswith(";"):
                self.lines.append(ln); continue
            if ln.endswith(":"):
                self.label(ln[:-1]); continue
            self.ins(ln)
    def ins(self, text):
        c = Ins(text)
        if c.mn == "s_nop":
            n = int(text.split()[1]) + 1
            self.lines.append("\t" + text)
            self._push(None, n)
            return
        need, why = self._need(c)
        while need > 0:
            k = min(need, 16)
            self.lines.append("\ts_nop %d" % (k - 1))
            self.nops += 1
            self._push(None, k)
            need -= k
        self.lines.append("\t" + text)
        self._push(c, 1)
    def vmem(self, text, tag=None):
        self.ins(text)
        self.vm.append(tag)
        assert len(self.vm) <= 63, "vmcnt overflow"
    def wait_vm(self, tag):
        idx = max(i for i, t in enumerate(self.vm) if t == tag)
        n = len(self.vm) - 1 - idx
        self.ins("s_waitcnt vmcnt(%d)" % n)
        self.vm = self.vm[idx + 1:]
    def wait_vm_all(self):
        self.ins("s_waitcnt vmcnt(0)")
        self.vm = []
    def vm_done(self, tag):
        return tag not in self.vm
    def text(self):
        return "\n".join(self.lines) + "\n"

class Regs:
    def __init__(self, vmax=168, smax=100, v0=0, s0=0):
        self.vn = v0; self.sn = s0; self.vmax = vmax; self.smax = smax
        self.names = {}
        self.vhigh = v0
    def v(self, name, n=1, align=None):
        if align is None: align = 2 if n >= 2 else 1
        if n >= 4: align = max(align, 4) if align < 4 else align
        b = (self.vn + align - 1) // align * align
        self.vn = b + n
        assert self.vn <= self.vmax, "out of vgprs at %s" % name
        self.vhigh = max(self.vhigh, self.vn)
        self.names[name] = b
        return b
    def s(self, name, n=1, align=None):
        if align is None: align = 4 if n >= 4 else (2 if n == 2 else 1)
        b = (self.sn + align - 1) // align * align
        self.sn = b + n
        assert self.sn <= self.smax, "out of sgprs at %s" % name
        self.names[name] = b
        return b

def vr(b, n=1):
    return "v%d" % b if n == 1 else "v[%d:%d]" % (b, b + n - 1)
def sr(b, n=1):
    return "s%d" % b if n == 1 else "s[%d:%d]" % (b, b + n - 1)
```

```python
import sys
sys.path.insert(0, "gen")
from asmlib import *

NAME = "sequential_preLN__sliding_block_cached__glu_gated_bilinear__decode_kernel"

WS_EPOCH = 0
WS_H1   = 0x1000
WS_H2   = 0x20000
WS_H3   = 0x80000
WS_HH   = 0xA8000
WS_H4   = 0xB0000
WS_TS   = 0x180000
WS_SIZE = 0x200000

L_QT = 0x000
L_MX = 0x200
L_LS = 0x280
L_OP = 0x400
L_T1 = 0x2400
L_T2 = 0x2800
L_T3 = 0x3200
L_GP = 0x3400
LDS_BYTES = 0x4400

TAGMASK = 0xFFF
C1 = 0.08838834764831845 * 1.4426950408889634
import struct
def f2u(x): return struct.unpack("<I", struct.pack("<f", x))[0]

NWAVES = 12
POLL_MAX = 200000

S_WAVE = 3; S_X = 4; S_G = 5; S_J = 6; S_S = 7
P_X = 8; P_K = 10; P_V = 12; P_WQ = 14; P_WO = 16; P_BX = 18; P_WG = 20; P_WU = 22
P_WD = 24; P_OUT = 26; P_DBG = 28; P_WS = 30
SRD_K = 32; SRD_V = 36; SRD_WS = 40; SRD_X = 44
S_TAG = 48; S_MASK = 49; S_T0 = 50; S_T1 = 51; S_T2 = 52; S_T3 = 53; S_CNT = 54; S_KV = 55; S_KV2 = 56
S_BASE = 58
S_STR = 60
S_U = 62
S_T9 = 63
S_BASE2 = 64
S_EP = 66
TSB = 70

class Gen:
    def __init__(self, ts=False, wk=3, pre=8, ww=2, wwo=6, fpre=1, wopre=4, knat=False, noq=False, amap=0):
        self.a = Asm()
        self.amap = amap
        self.noq = noq
        self.knat = knat
        self.ts = ts
        self.wk = wk; self.pre = pre; self.ww = ww; self.wwo = wwo; self.fpre = fpre; self.wopre = wopre
        self.nlab = 0
        self.vmax = 0
    def lab(self, p="L"):
        self.nlab += 1
        return "%s%d" % (p, self.nlab)
    def TS(self, i):
        if self.ts:
            self.a("s_memtime s[%d:%d]" % (TSB + 2 * i, TSB + 2 * i + 1))
            if i == 0: self.a("s_memrealtime s[90:91]")
    def ts_init(self):
        if self.ts:
            for i in range(10):
                self.a("s_mov_b64 s[%d:%d], 0" % (TSB + 2 * i, TSB + 2 * i + 1))
    def ts_flush(self, vt):
        if not self.ts: return
        a = self.a
        a("s_memtime s[92:93]")
        a("s_memrealtime s[94:95]")
        a("s_waitcnt lgkmcnt(0)")
        a("s_mul_i32 s%d, s2, %d" % (S_T0, NWAVES))
        a("s_add_u32 s%d, s%d, s%d" % (S_T0, S_T0, S_WAVE))
        a("s_lshl_b32 s%d, s%d, 6" % (S_T0, S_T0))
        a("s_add_u32 s%d, s%d, %d" % (S_T0, S_T0, WS_TS))
        a("s_mov_b32 exec_lo, 1\ns_mov_b32 exec_hi, 0")
        a("v_mov_b32 v%d, 0" % vt)
        for i in range(10):
            a("v_mov_b32 v%d, s%d" % (vt + 1, TSB + 2 * i))
            a("buffer_store_dword v%d, v%d, s[%d:%d], s%d offen offset:%d" % (vt + 1, vt, SRD_WS, SRD_WS + 3, S_T0, 4 * i))
            a("s_nop 0")
        for i, r in enumerate((90, 92, 94)):
            a("v_mov_b32 v%d, s%d" % (vt + 1, r))
            a("buffer_store_dword v%d, v%d, s[%d:%d], s%d offen offset:%d" % (vt + 1, vt, SRD_WS, SRD_WS + 3, S_T0, 40 + 4 * i))
            a("s_nop 0")
    def end(self, vt=2):
        self.ts_flush(vt)
        self.a("s_endpgm")

    def srd(self, d, p, nrec):
        a = self.a
        a("s_mov_b32 s%d, s%d" % (d, p))
        a("s_and_b32 s%d, s%d, 0xffff" % (d + 1, p + 1))
        a("s_mov_b32 s%d, 0x%x" % (d + 2, nrec))
        a("s_mov_b32 s%d, 0x20000" % (d + 3))
    def load_tag(self):
        self.a("s_load_dword s%d, s[%d:%d], 0x%x" % (S_EP, P_WS, P_WS + 1, WS_EPOCH))
    def finish_tag(self, vT):
        a = self.a
        a("s_waitcnt lgkmcnt(0)")
        a("s_add_u32 s%d, s%d, 1" % (S_TAG, S_EP))
        a("s_and_b32 s%d, s%d, 0x%x" % (S_TAG, S_TAG, TAGMASK))
        a("s_movk_i32 s%d, 0x%x" % (S_MASK, TAGMASK))
        a("v_mov_b32 v%d, s%d" % (vT, S_TAG))
    def masks(self, vlane, M, t0, t1):
        a = self.a
        a("v_and_b32 v%d, 1, v%d" % (t0, vlane))
        a("v_lshlrev_b32 v%d, 4, v%d" % (t0, t0))
        a("v_mov_b32 v%d, 0xffff" % t1)
        a("v_lshlrev_b32 v%d, v%d, v%d" % (t0, t0, t1))
        a("v_bfe_u32 v%d, v%d, 1, 2" % (t1, vlane))
        for j in range(4):
            a("v_cmp_eq_u32 vcc, %d, v%d" % (j, t1))
            a("v_cndmask_b32 v%d, 0, v%d, vcc" % (M + j, t0))
    def rho(self, vlane, dst, t0):
        a = self.a
        a("v_lshrrev_b32 v%d, 4, v%d" % (t0, vlane))
        a("v_bfe_u32 v%d, v%d, 3, 1" % (dst, vlane))
        a("v_lshl_add_u32 v%d, v%d, 1, v%d" % (dst, t0, dst))
    def bbuild(self, B, x, M):
        for j in range(4):
            self.a("v_and_b32 v%d, v%d, v%d" % (B + j, x, M + j))
    def mfma(self, D, A, B, C):
        c = "0" if C is None else vr(C, 4)
        self.a("v_mfma_f32_16x16x32_bf16 %s, %s, %s, %s" % (vr(D, 4), vr(A, 4), vr(B, 4), c))
    def merge(self, D, Y, Z):
        a = self.a
        for j in range(4):
            a("v_mov_b32_dpp v%d, v%d row_ror:8 row_mask:0xf bank_mask:0xf" % (Y + j, D + j))
        for j in range(4):
            a("v_permlane32_swap_b32 v%d, v%d" % (Y + j, Z + j))
        for j in range(4):
            a("v_add_f32 v%d, v%d, v%d" % (D + j, D + j, Z + j))
    def tag4(self, D, vT, n=4):
        for j in range(n):
            self.a("v_bfi_b32 v%d, s%d, v%d, v%d" % (D + j, S_MASK, vT, D + j))
    def check4(self, bad, D, vT, tmp, first):
        a = self.a
        if first:
            a("v_bitop3_b32 v%d, v%d, v%d, v%d bitop3:0x7e" % (bad, D, D + 1, vT))
            a("v_bitop3_b32 v%d, v%d, v%d, v%d bitop3:0x7e" % (tmp, D + 2, D + 3, vT))
            a("v_or_b32 v%d, v%d, v%d" % (bad, bad, tmp))
        else:
            a("v_bitop3_b32 v%d, v%d, v%d, v%d bitop3:0x7e" % (tmp, D, D + 1, vT))
            a("v_bitop3_b32 v%d, v%d, v%d, v%d bitop3:0x7e" % (tmp + 1, D + 2, D + 3, vT))
            a("v_or3_b32 v%d, v%d, v%d, v%d" % (bad, bad, tmp, tmp + 1))
    def poll_begin(self):
        L = self.lab("Lp")
        self.a("s_mov_b32 s%d, 0" % S_CNT)
        self.a.label(L)
        return L
    def poll_end(self, L, bad):
        a = self.a
        Lok = self.lab("Lok")
        a("v_and_b32 v%d, s%d, v%d" % (bad, S_MASK, bad))
        a("v_cmp_ne_u32 vcc, 0, v%d" % bad)
        a("s_cbranch_vccz %s" % Lok)
        a("s_add_u32 s%d, s%d, 1" % (S_CNT, S_CNT))
        a("s_cmp_lt_u32 s%d, %d" % (S_CNT, POLL_MAX))
        a("s_cbranch_scc1 %s" % L)
        a.label(Lok)
    def allsum(self, regs, t, op="v_add_f32"):
        a = self.a
        for mod in ("quad_perm:[1,0,3,2]", "quad_perm:[2,3,0,1]", "row_half_mirror", "row_mirror"):
            for r in regs:
                a("%s_dpp v%d, v%d, v%d %s row_mask:0xf bank_mask:0xf" % (op, r, r, r, mod))
        self.rowsum(regs, t, op)
    def rowsum(self, regs, t, op="v_add_f32"):
        a = self.a
        for sw in ("v_permlane16_swap_b32", "v_permlane32_swap_b32"):
            for r, x in zip(regs, t): a("v_mov_b32 v%d, v%d" % (x, r))
            for r, x in zip(regs, t): a("%s v%d, v%d" % (sw, x, r))
            for r, x in zip(regs, t): a("%s v%d, v%d, v%d" % (op, r, r, x))
    def rbf16(self, r):
        self.a("v_cvt_pk_bf16_f32 v%d, v%d, v%d" % (r, r, r))
        self.a("v_and_b32 v%d, 0xffff0000, v%d" % (r, r))
    def exec_set(self, lo, hi):
        self.a("s_mov_b32 exec_lo, 0x%x" % lo)
        self.a("s_mov_b32 exec_hi, 0x%x" % hi)
    def exec_all(self):
        self.a("s_mov_b64 exec, -1")
    def barrier(self):
        self.a("s_waitcnt lgkmcnt(0)")
        self.a("s_barrier")

    def build(self):
        a = self.a
        a.raw("; @launch grid=(256,1,1) block=(%d,1,1) lds=%d" % (NWAVES * 64, LDS_BYTES))
        a.raw('.amdgcn_target "amdgcn-amd-amdhsa--gfx950"')
        a.raw(".text\n.globl %s\n.p2align 8\n.type %s,@function\n%s:" % (NAME, NAME, NAME))
        a("s_cmp_ge_u32 s2, 256")
        a("s_cbranch_scc1 L_end")
        a("s_load_dwordx16 s[8:23], s[0:1], 0")
        a("s_load_dwordx8 s[24:31], s[0:1], 64")
        self.ts_init()
        self.TS(0)
        a("v_lshrrev_b32 v1, 6, v0")
        a("v_and_b32 v0, 63, v0")
        a("v_readfirstlane_b32 s%d, v1" % S_WAVE)
        a("s_and_b32 s%d, s2, 7" % S_X)
        a("s_lshr_b32 s%d, s2, 3" % S_G)
        if self.amap == 0:
            a("s_and_b32 s%d, s%d, 1" % (S_J, S_G))
            a("s_lshl_b32 s%d, s%d, 1" % (S_S, S_X))
            a("s_or_b32 s%d, s%d, s%d" % (S_J, S_J, S_S))
            a("s_lshr_b32 s%d, s%d, 1" % (S_S, S_G))
        elif self.amap == 1:
            a("s_and_b32 s%d, s%d, 1" % (S_S, S_G))
            a("s_lshl_b32 s%d, s%d, 1" % (S_J, S_X))
            a("s_or_b32 s%d, s%d, s%d" % (S_S, S_S, S_J))
            a("s_lshr_b32 s%d, s%d, 1" % (S_J, S_G))
        elif self.amap == 2:
            a("s_add_u32 s%d, s%d, 3" % (S_S, S_X))
            a("s_and_b32 s%d, s%d, 7" % (S_S, S_S))
            a("s_lshl_b32 s%d, s%d, 1" % (S_S, S_S))
            a("s_and_b32 s%d, s%d, 1" % (S_J, S_G))
            a("s_or_b32 s%d, s%d, s%d" % (S_J, S_J, S_S))
            a("s_lshr_b32 s%d, s%d, 1" % (S_S, S_G))
        a("s_cmp_lt_u32 s%d, 8" % S_WAVE)
        a("s_cbranch_scc1 L_att")
        a("s_cmp_eq_u32 s%d, 8" % S_WAVE)
        a("s_cbranch_scc1 L_aux")
        a("s_cmp_eq_u32 s%d, 9" % S_WAVE)
        a("s_cbranch_scc1 L_ch")
        a("s_cmp_ge_u32 s2, 208")
        a("s_cbranch_scc1 L_red")
        a.label("L_end")
        a("s_endpgm")
        self.att()
        self.aux()
        self.ch()
        self.red()
        nv = (self.vmax + 7) // 8 * 8
        a.raw(""".section .rodata,"a"
.p2align 6
.amdhsa_kernel %s
  .amdhsa_next_free_vgpr %d
  .amdhsa_next_free_sgpr 96
  .amdhsa_accum_offset %d
  .amdhsa_group_segment_fixed_size 0
  .amdhsa_kernarg_size 96
  .amdhsa_user_sgpr_count 2
  .amdhsa_user_sgpr_kernarg_segment_ptr 1
  .amdhsa_system_sgpr_workgroup_id_x 1
.end_amdhsa_kernel""" % (NAME, max(nv, 136), max(nv, 136)))
        return a.text()

    def unit_ids(self):
        a = self.a
        L1 = self.lab(); L2 = self.lab()
        a("s_cmp_lt_u32 s2, 144")
        a("s_cbranch_scc0 %s" % L1)
        a("s_lshr_b32 s%d, s%d, 1" % (S_T0, S_G))
        a("s_lshl_b32 s%d, s%d, 3" % (S_T0, S_T0))
        a("s_add_u32 s%d, s%d, s%d" % (S_T0, S_T0, S_X))
        a("s_lshl_b32 s%d, s%d, 1" % (S_T0, S_T0))
        a("s_and_b32 s%d, s%d, 1" % (S_T1, S_G))
        a("s_add_u32 s%d, s%d, s%d" % (S_U, S_T0, S_T1))
        a("s_branch %s" % L2)
        a.label(L1)
        a("s_sub_u32 s%d, s2, 144" % S_U)
        a.label(L2)

    def waddr_F(self, vA, vB, t0, t1, t2):
        a = self.a
        self.rho(0, t0, t1)
        a("s_lshl_b32 s%d, s%d, 6" % (S_T0, S_T9))
        a("v_add_u32 v%d, s%d, v%d" % (t1, S_T0, t0))
        a("s_movk_i32 s%d, 9216" % S_T1)
        a("v_mul_lo_u32 v%d, v%d, s%d" % (t1, t1, S_T1))
        a("v_and_b32 v%d, 3, v0" % t2)
        a("v_lshl_add_u32 v%d, v%d, 4, v%d" % (t1, t2, t1))
        a("s_lshl_b32 s%d, s%d, 6" % (S_T0, S_U))
        a("v_add_u32 v%d, s%d, v%d" % (t1, S_T0, t1))
        a("v_bfe_u32 v%d, v0, 2, 1" % t2)
        a("v_cmp_eq_u32 vcc, 1, v%d" % t2)
        a("v_mov_b32 v%d, s%d" % (vA, P_WG))
        a("v_mov_b32 v%d, s%d" % (vA + 1, P_WG + 1))
        a("v_mov_b32 v%d, s%d" % (t2, P_WU))
        a("v_cndmask_b32 v%d, v%d, v%d, vcc" % (vA, vA, t2))
        a("v_mov_b32 v%d, s%d" % (t2, P_WU + 1))
        a("v_cndmask_b32 v%d, v%d, v%d, vcc" % (vA + 1, vA + 1, t2))
        a("v_add_co_u32 v%d, vcc, v%d, v%d" % (vA, vA, t1))
        a("v_addc_co_u32 v%d, vcc, 0, v%d, vcc" % (vA + 1, vA + 1))
        a("s_mov_b32 s%d, 73728" % S_STR)
        a("s_mov_b32 s%d, 0" % (S_STR + 1))
        a("v_mul_u32_u24 v%d, 1152, v%d" % (vB, t0))
        a("v_and_b32 v%d, 7, v0" % t2)
        a("v_lshl_add_u32 v%d, v%d, 4, v%d" % (vB, t2, vB))
        a("s_mul_i32 s%d, s%d, %d" % (S_T0, S_U, 32 * 1152))
        a("s_lshl_b32 s%d, s%d, 7" % (S_T1, S_T9))
        a("s_add_u32 s%d, s%d, s%d" % (S_T0, S_T0, S_T1))
        a("s_add_u32 s%d, s%d, s%d" % (S_BASE2, P_WD, S_T0))
        a("s_addc_u32 s%d, s%d, 0" % (S_BASE2 + 1, P_WD + 1))
    def waddr_WO(self, vB, t0, t2):
        a = self.a
        self.rho(0, t0, t2)
        a("v_mul_u32_u24 v%d, 1152, v%d" % (vB, t0))
        a("v_and_b32 v%d, 7, v0" % t2)
        a("v_lshl_add_u32 v%d, v%d, 4, v%d" % (vB, t2, vB))
        a("s_mul_i32 s%d, s%d, %d" % (S_T0, S_U, 64 * 1152))
        a("s_lshl_b32 s%d, s%d, 7" % (S_T1, S_T9))
        a("s_add_u32 s%d, s%d, s%d" % (S_T0, S_T0, S_T1))
        a("s_add_u32 s%d, s%d, s%d" % (S_BASE2, P_WO, S_T0))
        a("s_addc_u32 s%d, s%d, 0" % (S_BASE2 + 1, P_WO + 1))

    def sregs(self):
        R = {}
        R["T"] = 1; R["koff"] = 2; R["voff"] = 3; R["t"] = 4
        R["M"] = 12; R["qB"] = 16; R["S"] = 20
        R["B"] = 28; R["B2"] = 32; R["acc"] = 36
        R["wa"] = 40; R["wb"] = 42; R["m"] = 43
        R["K"] = 44
        R["V"] = 76
        R["Dn"] = 108
        R["X"] = 124
        self.vmax = max(self.vmax, 132)
        return R

    def issue_list(self, role, R, att=True):
        a = self.a
        L = []
        if att:
            for t in range(8):
                so = S_KV if t < 4 else S_KV2
                L.append(("K%d" % t, lambda t=t, so=so: a.vmem("buffer_load_dwordx4 %s, v%d, s[%d:%d], s%d offen offset:%d nt" % (vr(R["K"] + 4 * t, 4), R["koff"], SRD_K, SRD_K + 3, so, (t % 4) * 1024), "K%d" % t)))
            for t in range(8):
                so = S_KV if t < 4 else S_KV2
                L.append(("V%d" % t, lambda t=t, so=so: a.vmem("buffer_load_dwordx4 %s, v%d, s[%d:%d], s%d offen offset:%d nt" % (vr(R["V"] + 4 * t, 4), R["voff"], SRD_V, SRD_V + 3, so, (t % 4) * 1024), "V%d" % t)))
        if role == "F":
            for t in range(8):
                def f(t=t):
                    a.vmem("global_load_dwordx4 %s, %s, off nt" % (vr(R["K"] + 4 * t, 4), vr(R["wa"], 2)), "W%d" % t)
                    if t < 7: a("v_lshl_add_u64 %s, %s, 0, s[%d:%d]" % (vr(R["wa"], 2), vr(R["wa"], 2), S_STR, S_STR + 1))
                L.append(("W%d" % t, f))
            for t in range(4):
                def f(t=t):
                    a.vmem("global_load_dwordx4 %s, v%d, s[%d:%d] nt" % (vr(R["Dn"] + 4 * t, 4), R["wb"], S_BASE2, S_BASE2 + 1), "D%d" % t)
                    if t < 3:
                        a("s_add_u32 s%d, s%d, 9216" % (S_BASE2, S_BASE2))
                        a("s_addc_u32 s%d, s%d, 0" % (S_BASE2 + 1, S_BASE2 + 1))
                L.append(("D%d" % t, f))
        elif role == "WO":
            for t in range(8):
                def f(t=t):
                    a.vmem("global_load_dwordx4 %s, v%d, s[%d:%d] nt" % (vr(R["K"] + 4 * t, 4), R["wb"], S_BASE2, S_BASE2 + 1), "W%d" % t)
                    if t < 7:
                        a("s_add_u32 s%d, s%d, 9216" % (S_BASE2, S_BASE2))
                        a("s_addc_u32 s%d, s%d, 0" % (S_BASE2 + 1, S_BASE2 + 1))
                L.append(("W%d" % t, f))
        return L

    def att(self):
        a = self.a
        R = self.sregs()
        a.label("L_att", keep=False)
        a.vm = []
        t = R["t"]
        a("v_bfe_u32 v%d, v0, 2, 2" % t)
        a("v_lshlrev_b32 v%d, 8, v%d" % (t, t))
        a("v_lshrrev_b32 v%d, 4, v0" % (t + 1))
        a("v_lshl_add_u32 v%d, v%d, 6, v%d" % (t, t + 1, t))
        a("v_and_b32 v%d, 3, v0" % (t + 1))
        a("v_lshl_add_u32 v%d, v%d, 4, v%d" % (R["koff"], t + 1, t))
        a("v_lshlrev_b32 v%d, 4, v0" % R["voff"])
        if self.knat: a("v_mov_b32 v%d, v%d" % (R["koff"], R["voff"]))
        a("s_lshl_b32 s%d, s%d, 24" % (S_KV, S_J))
        a("s_lshl_b32 s%d, s%d, 16" % (S_T0, S_S))
        a("s_add_u32 s%d, s%d, s%d" % (S_KV, S_KV, S_T0))
        a("s_lshl_b32 s%d, s%d, 13" % (S_T0, S_WAVE))
        a("s_add_u32 s%d, s%d, s%d" % (S_KV, S_KV, S_T0))
        a("s_add_u32 s%d, s%d, 0xF00000" % (S_KV, S_KV))
        a("s_add_u32 s%d, s%d, 4096" % (S_KV2, S_KV))
        a("s_mov_b32 s%d, s%d" % (S_T9, S_WAVE))
        a("s_waitcnt lgkmcnt(0)")
        self.srd(SRD_K, P_K, 0x10000000)
        self.srd(SRD_V, P_V, 0x10000000)
        base_list = self.issue_list("RED", R)
        wk = self.wk
        for i in range(wk): base_list[i][1]()
        self.srd(SRD_WS, P_WS, WS_SIZE)
        self.load_tag()
        self.masks(0, R["M"], t, t + 1)
        a("v_bfe_u32 v%d, v0, 3, 1" % t)
        a("v_lshlrev_b32 v%d, 8, v%d" % (t, t))
        a("v_lshrrev_b32 v%d, 4, v0" % (t + 1))
        a("v_lshl_add_u32 v%d, v%d, 6, v%d" % (t, t + 1, t))
        a("v_and_b32 v%d, 3, v0" % (t + 1))
        a("v_lshl_add_u32 v%d, v%d, 4, v%d" % (t + 2, t + 1, t))
        self.unit_ids()
        nxt = wk
        while nxt < 8 + self.pre:
            a.wait_vm(base_list[nxt - wk][0])
            base_list[nxt][1]()
            nxt += 1
        self.finish_tag(R["T"])
        self.TS(2)
        self.barrier()
        self.TS(3)
        a("ds_read_b128 %s, v%d offset:%d" % (vr(R["qB"], 4), t + 2, L_QT))
        if not a.vm_done("K7"): a.wait_vm("K7")
        a("s_waitcnt lgkmcnt(0)")
        D = R["Dn"]
        S = R["S"]
        for grp in range(2):
            for i in range(4):
                self.mfma(D + 4 * i, R["K"] + 4 * (4 * grp + i), R["qB"], None)
            for step in range(4):
                for i in range(4):
                    tt = 4 * grp + i
                    if step == 0:
                        a("v_mov_b32_dpp v%d, v%d quad_perm:[0,0,0,0] row_mask:0xf bank_mask:0xf" % (S + tt, D + 4 * i))
                    else:
                        a("v_add_f32_dpp v%d, v%d, v%d quad_perm:[%d,%d,%d,%d] row_mask:0xf bank_mask:0xf" % (S + tt, D + 4 * i + step, S + tt, step, step, step, step))
        m = R["m"]
        a("v_max3_f32 v%d, v%d, v%d, v%d" % (m, S, S + 1, S + 2))
        a("v_max3_f32 v%d, v%d, v%d, v%d" % (t, S + 3, S + 4, S + 5))
        a("v_max3_f32 v%d, v%d, v%d, v%d" % (m, m, S + 6, S + 7))
        a("v_max_f32 v%d, v%d, v%d" % (m, m, t))
        self.rowsum([m], [t], "v_max_f32")
        a("v_bfe_u32 v%d, v0, 3, 1" % t)
        a("v_lshlrev_b32 v%d, 5, v%d" % (t + 3, t))
        a("s_lshl_b32 s%d, s%d, 2" % (S_T0, S_WAVE))
        a("v_add_u32 v%d, s%d, v%d" % (t + 4, S_T0, t + 3))
        self.exec_set(0x101, 0)
        a("ds_write_b32 v%d, v%d offset:%d" % (t + 4, m, L_MX))
        self.exec_all()
        self.barrier()
        self.TS(4)
        X = R["X"]
        a("ds_read_b128 %s, v%d offset:%d" % (vr(X, 4), t + 3, L_MX))
        a("ds_read_b128 %s, v%d offset:%d" % (vr(X + 4, 4), t + 3, L_MX + 16))
        a("s_cmp_lt_u32 s2, 144")
        a("s_cbranch_scc1 L_att_F")
        a("s_cmp_lt_u32 s2, 208")
        a("s_cbranch_scc1 L_att_WO")
        hist0 = list(a.hist); vm0 = list(a.vm)
        for role in ("RED", "F", "WO"):
            a.hist = list(hist0); a.vm = list(vm0)
            if role != "RED": a.label("L_att_%s" % role)
            self.att_tail(role, R, nxt)

    def softmax_p(self, R):
        a = self.a
        t = R["t"]; X = R["X"]; S = R["S"]; m = R["m"]
        a("s_waitcnt lgkmcnt(0)")
        a("v_max3_f32 v%d, v%d, v%d, v%d" % (m, X, X + 1, X + 2))
        a("v_max3_f32 v%d, v%d, v%d, v%d" % (t, X + 3, X + 4, X + 5))
        a("v_max3_f32 v%d, v%d, v%d, v%d" % (m, m, X + 6, X + 7))
        a("v_max_f32 v%d, v%d, v%d" % (m, m, t))
        a("s_mov_b32 s%d, 0x%x" % (S_T0, f2u(C1)))
        a("v_mul_f32 v%d, s%d, v%d" % (m, S_T0, m))
        a("v_and_b32 v%d, 0xfffff000, v%d" % (m, m))
        for i in range(8):
            a("v_fma_f32 v%d, v%d, s%d, -v%d" % (S + i, S + i, S_T0, m))
        for i in range(8):
            a("v_exp_f32 v%d, v%d" % (S + i, S + i))
        a("v_add_f32 v%d, v%d, v%d" % (t, S, S + 1))
        a("v_add_f32 v%d, v%d, v%d" % (t + 1, S + 2, S + 3))
        a("v_add_f32 v%d, v%d, v%d" % (t + 5, S + 4, S + 5))
        a("v_add_f32 v%d, v%d, v%d" % (t + 6, S + 6, S + 7))
        a("v_add_f32 v%d, v%d, v%d" % (t, t, t + 1))
        a("v_add_f32 v%d, v%d, v%d" % (t + 5, t + 5, t + 6))
        a("v_add_f32 v%d, v%d, v%d" % (t, t, t + 5))
        for i in range(8):
            a("v_cvt_pk_bf16_f32 v%d, v%d, v%d" % (S + i, S + i, S + i))
        self.rowsum([t], [t + 1])
        self.exec_set(0x101, 0)
        a("ds_write_b32 v%d, v%d offset:%d" % (t + 4, t, L_LS))
        self.exec_all()

    def att_tail(self, role, R, nxt):
        a = self.a
        t = R["t"]; S = R["S"]
        lst = self.issue_list(role, R)
        idx = {tag: i for i, (tag, f) in enumerate(lst)}
        if role == "F": self.waddr_F(R["wa"], R["wb"], t, t + 1, t + 5)
        if role == "WO": self.waddr_WO(R["wb"], t, t + 5)
        self.softmax_p(R)
        wpre = {"F": self.fpre, "WO": self.wopre, "RED": 0}[role]
        lim = 16 + wpre
        win = self.wk if role != "WO" else self.wwo
        for tt in range(8):
            B = R["B"] if tt % 2 == 0 else R["B2"]
            self.bbuild(B, S + tt, R["M"])
            tag = "V%d" % tt
            if not a.vm_done(tag): a.wait_vm(tag)
            while nxt < min(len(lst), lim) and nxt <= idx[tag] + win:
                lst[nxt][1](); nxt += 1
            self.mfma(R["acc"], R["V"] + 4 * tt, B, None if tt == 0 else R["acc"])
        a("s_lshl_b32 s%d, s%d, 10" % (S_T0, S_WAVE))
        a("v_add_u32 v%d, s%d, v%d" % (t, S_T0, R["voff"]))
        a("ds_write_b128 v%d, %s offset:%d" % (t, vr(R["acc"], 4), L_OP))
        a("v_lshrrev_b32 v%d, 3, v0" % t)
        a("v_lshlrev_b32 v%d, 10, v%d" % (t, t))
        a("v_and_b32 v%d, 7, v0" % (t + 1))
        a("v_lshl_add_u32 v%d, v%d, 4, v%d" % (t, t + 1, t))
        a("s_lshl_b32 s%d, s%d, 7" % (S_T0, S_WAVE))
        a("v_add_u32 v%d, s%d, v%d" % (t, S_T0, t))
        a("v_lshlrev_b32 v%d, 4, v%d" % (t + 1, t + 1))
        a("s_and_b32 s%d, s%d, 1" % (S_T0, S_WAVE))
        a("s_lshl_b32 s%d, s%d, 1" % (S_T1, S_T0))
        a("s_lshr_b32 s%d, s%d, 2" % (S_T2, S_WAVE))
        a("s_add_u32 s%d, s%d, s%d" % (S_T1, S_T1, S_T2))
        a("s_lshl_b32 s%d, s%d, 2" % (S_T2, S_J))
        a("s_add_u32 s%d, s%d, s%d" % (S_T1, S_T1, S_T2))
        a("s_mul_i32 s%d, s%d, 6144" % (S_T1, S_T1))
        a("s_mul_i32 s%d, s%d, 384" % (S_T2, S_S))
        a("s_add_u32 s%d, s%d, s%d" % (S_T1, S_T1, S_T2))
        a("s_add_u32 s%d, s%d, 0x%x" % (S_T1, S_T1, WS_H2))
        a("s_bfe_u32 s%d, s%d, 0x10001" % (S_T2, S_WAVE))
        a("s_lshl_b32 s%d, s%d, 7" % (S_T3, S_T2))
        a("s_add_u32 s%d, s%d, s%d" % (S_T3, S_T3, S_T1))
        a("s_lshl_b32 s%d, s%d, 5" % (S_T0, S_T0))
        a("v_mov_b32 v%d, s%d" % (t + 2, S_T0))
        self.TS(5)
        self.barrier()
        X = R["X"]
        a("ds_read_b128 %s, v%d offset:%d" % (vr(X, 4), t, L_OP))
        a("ds_read_b128 %s, v%d offset:%d" % (vr(R["B"], 4), t + 2, L_LS))
        a("ds_read_b128 %s, v%d offset:%d" % (vr(R["B2"], 4), t + 2, L_LS + 16))
        a("s_waitcnt lgkmcnt(0)")
        regs = [X, X + 1, X + 2, X + 3]
        for r in regs:
            a("v_add_f32_dpp v%d, v%d, v%d row_ror:8 row_mask:0xf bank_mask:0xf" % (r, r, r))
        self.rowsum(regs, [X + 4, X + 5, X + 6, X + 7])
        self.tag4(X, R["T"])
        self.exec_set(0xFF, 0)
        a.vmem("buffer_store_dwordx4 %s, v%d, s[%d:%d], s%d offen sc1" % (vr(X, 4), t + 1, SRD_WS, SRD_WS + 3, S_T3), "st")
        self.exec_all()
        Lml = self.lab()
        a("s_cmp_eq_u32 s%d, 0" % S_T2)
        a("s_cbranch_scc0 %s" % Lml)
        B = R["B"]; B2 = R["B2"]
        for j in range(4): a("v_add_f32 v%d, v%d, v%d" % (B + j, B + j, B2 + j))
        a("v_add_f32 v%d, v%d, v%d" % (B, B, B + 1))
        a("v_add_f32 v%d, v%d, v%d" % (B + 2, B + 2, B + 3))
        a("v_add_f32 v%d, v%d, v%d" % (B2 + 1, B, B + 2))
        a("v_mov_b32 v%d, v%d" % (B2, R["m"]))
        a("v_mov_b32 v%d, 0" % (B2 + 2))
        a("v_mov_b32 v%d, 0" % (B2 + 3))
        self.tag4(B2, R["T"])
        a("v_mov_b32 v%d, 0" % (t + 1))
        a("s_lshr_b32 s%d, s%d, 2" % (S_T0, S_T0))
        a("s_lshl_b32 exec_lo, 1, s%d" % S_T0)
        a("s_mov_b32 exec_hi, 0")
        a("buffer_store_dwordx4 %s, v%d, s[%d:%d], s%d offen offset:256 sc1" % (vr(B2, 4), t + 1, SRD_WS, SRD_WS + 3, S_T1))
        self.exec_all()
        a.label(Lml)
        self.TS(1)
        if role == "RED":
            self.end(t)
            return
        self.stream_tail(role, R, lst, nxt)

    def stream_tail(self, role, R, lst, nxt):
        a = self.a
        t = R["t"]; X = R["X"]
        ww = self.ww if role == "F" else self.wwo
        while nxt < len(lst):
            j = nxt - ww
            if j >= 0 and not a.vm_done(lst[j][0]): a.wait_vm(lst[j][0])
            lst[nxt][1](); nxt += 1
        self.TS(6)
        self.rho(0, t, t + 1)
        if role == "F":
            a("v_mul_u32_u24 v%d, 288, v%d" % (t + 1, t))
            a("s_lshl_b32 s%d, s%d, 5" % (S_T0, S_T9))
            a("v_add_u32 v%d, s%d, v%d" % (t + 1, S_T0, t + 1))
            tab = L_T2
        else:
            a("v_lshlrev_b32 v%d, 5, v%d" % (t + 1, t))
            tab = L_T3
        a("v_and_b32 v%d, 7, v0" % (t + 4))
        a("v_lshlrev_b32 v%d, 4, v%d" % (t + 2, t))
        a("v_lshl_add_u32 v%d, v%d, 8, v%d" % (t + 2, t + 4, t + 2))
        RS = 18432 if role == "F" else 8192
        a("v_bfe_u32 v%d, v0, 4, 1" % (t + 3))
        a("v_mul_u32_u24 v%d, %d, v%d" % (t + 5, RS, t + 3))
        a("v_lshl_add_u32 v%d, v%d, 4, v%d" % (t + 6, t + 4, t + 5))
        a("s_mul_i32 s%d, s%d, %d" % (S_T1, S_T9, 2 * RS))
        a("s_lshl_b32 s%d, s%d, 7" % (S_T2, S_U))
        a("s_add_u32 s%d, s%d, s%d" % (S_T1, S_T1, S_T2))
        a("s_add_u32 s%d, s%d, 0x%x" % (S_T1, S_T1, WS_H4 if role == "F" else WS_H3))
        a("v_lshlrev_b32 v%d, 7, v%d" % (t + 5, t + 3))
        a("v_lshl_add_u32 v%d, v%d, 4, v%d" % (t + 5, t + 4, t + 5))
        a("s_lshl_b32 s%d, s%d, 8" % (S_T2, S_T9))
        a("v_add_u32 v%d, s%d, v%d" % (t + 5, S_T2, t + 5))
        self.barrier()
        self.TS(7)
        a("ds_read_b128 %s, v%d offset:%d" % (vr(X, 4), t + 1, tab))
        a("ds_read_b128 %s, v%d offset:%d" % (vr(X + 4, 4), t + 1, tab + 16))
        if not a.vm_done("W7"): a.wait_vm("W7")
        a("s_waitcnt lgkmcnt(0)")
        acc = R["acc"]
        for tt in range(8):
            B = R["B"] if tt % 2 == 0 else R["B2"]
            self.bbuild(B, X + tt, R["M"])
            self.mfma(acc, R["K"] + 4 * tt, B, None if tt == 0 else acc)
        self.merge(acc, R["B"], R["B2"])
        if role == "F":
            self.exec_set(0x00FF00FF, 0)
            a("ds_write_b128 v%d, %s offset:%d" % (t + 5, vr(acc, 4), L_GP))
            self.exec_all()
            self.barrier()
            self.TS(8)
            V = R["V"]
            a("ds_read_b128 %s, v%d offset:%d" % (vr(V, 4), t + 2, L_GP))
            a("ds_read_b128 %s, v%d offset:%d" % (vr(V + 4, 4), t + 2, L_GP + 128))
            a("ds_read_b128 %s, v%d offset:%d" % (vr(V + 8, 4), t + 2, L_GP + 2048))
            a("ds_read_b128 %s, v%d offset:%d" % (vr(V + 12, 4), t + 2, L_GP + 2048 + 128))
            a("s_waitcnt lgkmcnt(0)")
            for j in range(8):
                a("v_add_f32 v%d, v%d, v%d" % (V + j, V + j, V + 8 + j))
            for mod in ("quad_perm:[1,0,3,2]", "quad_perm:[2,3,0,1]", "row_half_mirror"):
                for j in range(8):
                    a("v_add_f32_dpp v%d, v%d, v%d %s row_mask:0xf bank_mask:0xf" % (V + j, V + j, V + j, mod))
            for j in range(4):
                a("v_mul_f32 v%d, v%d, v%d" % (X + j, V + j, V + 4 + j))
            for j in range(4):
                a("v_cvt_pk_bf16_f32 v%d, v%d, v%d" % (X + j, X + j, X + j))
            a.wait_vm_all()
            for tt in range(4):
                B = R["B"] if tt % 2 == 0 else R["B2"]
                self.bbuild(B, X + tt, R["M"])
                self.mfma(acc, R["Dn"] + 4 * tt, B, None if tt == 0 else acc)
            self.merge(acc, R["B"], R["B2"])
        self.tag4(acc, R["T"])
        self.exec_set(0x00FF00FF, 0)
        a.vmem("buffer_store_dwordx4 %s, v%d, s[%d:%d], s%d offen sc1" % (vr(acc, 4), t + 6, SRD_WS, SRD_WS + 3, S_T1), "st")
        self.TS(9)
        self.end(t)

    def aux(self):
        a = self.a
        R = self.sregs()
        t = R["t"]
        a.label("L_aux", keep=False)
        a.vm = []
        a("s_cmp_ge_u32 s2, 208")
        a("s_cbranch_scc1 L_red")
        a("v_lshlrev_b32 v%d, 4, v0" % t)
        for j in range(4): a("v_mov_b32 v%d, 0" % (R["B"] + j))
        a("ds_write_b128 v%d, %s offset:%d" % (t, vr(R["B"], 4), L_GP + 2304))
        a("ds_write_b128 v%d, %s offset:%d" % (t, vr(R["B"], 4), L_GP + 2304 + 768))
        a("s_mov_b32 s%d, 8" % S_T9)
        a("s_waitcnt lgkmcnt(0)")
        self.srd(SRD_WS, P_WS, WS_SIZE)
        self.load_tag()
        self.masks(0, R["M"], t, t + 1)
        self.unit_ids()
        self.finish_tag(R["T"])
        self.barrier()
        self.barrier()
        a("s_cmp_lt_u32 s2, 144")
        a("s_cbranch_scc1 L_aux_F")
        hist0 = list(a.hist)
        for role in ("WO", "F"):
            a.hist = list(hist0); a.vm = []
            if role == "F": a.label("L_aux_F")
            lst = self.issue_list(role, R, att=False)
            if role == "F": self.waddr_F(R["wa"], R["wb"], t, t + 1, t + 5)
            else: self.waddr_WO(R["wb"], t, t + 5)
            w0 = 2 if role == "F" else 4
            for i in range(w0): lst[i][1]()
            self.barrier()
            self.stream_tail(role, R, lst, w0)

    def ln_stats_ref(self, s1, d0list, tmp, nvalid_mask=None):
        pass

    def ch(self):
        a = self.a
        a.label("L_ch", keep=False)
        a.vm = []
        T = 1; t = 2
        M = 16; B = 20; B2 = 24; acc = 28
        XR = 32
        XF = 40
        W = 56
        XD = 128
        self.vmax = max(self.vmax, 148)
        a("v_lshlrev_b32 v%d, 5, v0" % t)
        self.rho(0, t + 1, t + 2)
        a("v_lshlrev_b32 v%d, 13, v%d" % (t + 1, t + 1))
        a("v_and_b32 v%d, 7, v0" % (t + 2))
        a("v_lshl_add_u32 v%d, v%d, 4, v%d" % (t + 1, t + 2, t + 1))
        a("s_and_b32 s%d, s%d, 3" % (S_T2, S_S))
        a("s_lshr_b32 s%d, s%d, 2" % (S_T3, S_S))
        a("s_mul_i32 s%d, s%d, %d" % (S_T0, S_T2, 144 * 8192))
        a("s_lshl_b32 s%d, s%d, 9" % (S_T1, S_J))
        a("s_add_u32 s%d, s%d, s%d" % (S_T0, S_T0, S_T1))
        a("s_lshl_b32 s%d, s%d, 7" % (S_T1, S_T3))
        a("s_add_u32 s%d, s%d, s%d" % (S_T0, S_T0, S_T1))
        a("s_waitcnt lgkmcnt(0)")
        if self.noq:
            self.srd(SRD_X, P_X, 1152)
            self.srd(SRD_WS, P_WS, WS_SIZE)
            self.load_tag()
            self.masks(0, M, t + 2, t + 3)
            self.unit_ids()
            self.finish_tag(T)
            a("s_branch L_noq")
        self.srd(SRD_X, P_X, 1152)
        a("s_add_u32 s%d, s%d, s%d" % (S_BASE, P_WQ, S_T0))
        a("s_addc_u32 s%d, s%d, 0" % (S_BASE + 1, P_WQ + 1))
        a.vmem("buffer_load_dwordx4 %s, v%d, s[%d:%d], 0 offen" % (vr(XR, 4), t, SRD_X, SRD_X + 3), "x0")
        a.vmem("buffer_load_dwordx4 %s, v%d, s[%d:%d], 0 offen offset:16" % (vr(XR + 4, 4), t, SRD_X, SRD_X + 3), "x1")
        for i in range(18):
            a.vmem("global_load_dwordx4 %s, v%d, s[%d:%d] nt" % (vr(W + 4 * i, 4), t + 1, S_BASE, S_BASE + 1), "w%d" % i)
            if i < 17:
                a("s_add_u32 s%d, s%d, 65536" % (S_BASE, S_BASE))
                a("s_addc_u32 s%d, s%d, 0" % (S_BASE + 1, S_BASE + 1))
        self.TS(1)
        self.srd(SRD_WS, P_WS, WS_SIZE)
        self.load_tag()
        self.masks(0, M, t + 2, t + 3)
        self.unit_ids()
        a.wait_vm("x1")
        for i in range(8):
            a("v_lshlrev_b32 v%d, 16, v%d" % (XF + 2 * i, XR + i))
            a("v_and_b32 v%d, 0xffff0000, v%d" % (XF + 2 * i + 1, XR + i))
        self.ln_norm(list(range(XF, XF + 16)), t + 2, valid_lanes=36)
        for i in range(16):
            a("v_cvt_pk_bf16_f32 v%d, v%d, v%d" % (XF + i, XF + i, XF + i))
        a("s_mul_i32 s%d, s%d, 9" % (S_T0, S_T2))
        a("v_subrev_u32 v%d, s%d, v0" % (t + 2, S_T0))
        a("v_cmp_gt_u32 vcc, 9, v%d" % (t + 2))
        a("v_lshlrev_b32 v%d, 3, v%d" % (t + 2, t + 2))
        a("s_and_saveexec_b64 s[%d:%d], vcc" % (S_STR, S_STR + 1))
        for e in range(8):
            a("v_mov_b32 v%d, v%d" % (t + 4, XF + e))
            a("v_mov_b32 v%d, v%d" % (t + 5, XF + e + 8))
            a("ds_write_b64 v%d, %s offset:%d" % (t + 2, vr(t + 4, 2), L_T1 + e * 80))
        self.exec_all()
        a("s_waitcnt lgkmcnt(0)")
        self.rho(0, t + 2, t + 3)
        a("v_mul_u32_u24 v%d, 80, v%d" % (t + 2, t + 2))
        for i in range(5):
            a("ds_read_b128 %s, v%d offset:%d" % (vr(XD + 4 * i, 4), t + 2, L_T1 + 16 * i))
        a("s_waitcnt lgkmcnt(0)")
        for i in range(18):
            Bx = B if i % 2 == 0 else B2
            self.bbuild(Bx, XD + i, M)
            if not a.vm_done("w%d" % i): a.wait_vm("w%d" % i)
            self.mfma(acc, W + 4 * i, Bx, None if i == 0 else acc)
        self.finish_tag(T)
        self.merge(acc, B, B2)
        self.tag4(acc, T)
        a("v_bfe_u32 v%d, v0, 4, 1" % (t + 2))
        a("v_and_b32 v%d, 7, v0" % (t + 3))
        a("v_lshl_add_u32 v%d, v%d, 3, v%d" % (t + 2, t + 2, t + 3))
        a("v_lshlrev_b32 v%d, 4, v%d" % (t + 2, t + 2))
        a("s_lshl_b32 s%d, s%d, 12" % (S_T0, S_J))
        a("s_lshl_b32 s%d, s%d, 10" % (S_T1, S_T2))
        a("s_add_u32 s%d, s%d, s%d" % (S_T0, S_T0, S_T1))
        a("s_add_u32 s%d, s%d, 0x%x" % (S_T0, S_T0, WS_H1))
        a("s_lshl_b32 s%d, s%d, 8" % (S_T1, S_T3))
        a("s_add_u32 s%d, s%d, s%d" % (S_T1, S_T1, S_T0))
        self.exec_set(0x00FF00FF, 0)
        a.vmem("buffer_store_dwordx4 %s, v%d, s[%d:%d], s%d offen sc1" % (vr(acc, 4), t + 2, SRD_WS, SRD_WS + 3, S_T1), "st")
        self.exec_all()
        self.TS(2)
        a("v_lshlrev_b32 v%d, 4, v0" % (t + 2))
        a("s_lshl_b32 s%d, s%d, 12" % (S_T0, S_J))
        a("s_add_u32 s%d, s%d, 0x%x" % (S_T0, S_T0, WS_H1))
        G = W
        a.vm = []
        L = self.poll_begin()
        for k in range(4):
            a("buffer_load_dwordx4 %s, v%d, s[%d:%d], s%d offen offset:%d sc1" % (vr(G + 4 * k, 4), t + 2, SRD_WS, SRD_WS + 3, S_T0, 1024 * k))
        a("s_waitcnt vmcnt(0)")
        for k in range(4): self.check4(t + 3, G + 4 * k, T, t + 4, k == 0)
        self.poll_end(L, t + 3)
        for j in range(4):
            a("v_add_f32 v%d, v%d, v%d" % (G + j, G + j, G + 4 + j))
            a("v_add_f32 v%d, v%d, v%d" % (G + 8 + j, G + 8 + j, G + 12 + j))
        for j in range(4):
            a("v_add_f32 v%d, v%d, v%d" % (G + j, G + j, G + 8 + j))
        for j in range(4):
            a("v_cvt_pk_bf16_f32 v%d, v%d, v%d" % (G + j, G + j, G + j))
        a("v_lshrrev_b32 v%d, 3, v0" % (t + 3))
        a("v_lshlrev_b32 v%d, 5, v%d" % (t + 3, t + 3))
        a("v_and_b32 v%d, 7, v0" % (t + 4))
        a("v_add_u32 v%d, v%d, v%d" % (t + 3, t + 3, t + 4))
        a("v_lshlrev_b32 v%d, 1, v%d" % (t + 3, t + 3))
        for j in range(4):
            a("ds_write_b16 v%d, v%d offset:%d" % (t + 3, G + j, L_QT + 16 * j))
        a.label("L_noq")
        self.TS(3)
        self.barrier()
        self.barrier()
        self.barrier()
        self.TS(4)
        a("s_cmp_lt_u32 s2, 144")
        a("s_cbranch_scc1 L_ch_F")
        a("s_cmp_lt_u32 s2, 208")
        a("s_cbranch_scc1 L_ch_WO")
        hist0 = list(a.hist)
        Lx = self.lab()
        a("s_cmp_lt_u32 s2, %d" % (208 + 18))
        a("s_cbranch_scc0 %s" % Lx)
        a("s_sub_u32 s%d, s2, 208" % S_U)
        XV = XD; G8 = W; HF = XD + 4
        a("v_and_b32 v%d, 7, v0" % (t + 2))
        a("v_lshlrev_b32 v%d, 1, v%d" % (t + 3, t + 2))
        a("s_lshl_b32 s%d, s%d, 6" % (S_T2, S_U))
        for j in range(4):
            a("buffer_load_ushort v%d, v%d, s[%d:%d], s%d offen offset:%d" % (XV + j, t + 3, SRD_X, SRD_X + 3, S_T2, 16 * j))
        a("v_lshlrev_b32 v%d, 4, v0" % (t + 4))
        a("s_lshl_b32 s%d, s%d, 13" % (S_T0, S_U))
        a("s_add_u32 s%d, s%d, 0x%x" % (S_T0, S_T0, WS_H3))
        a("s_add_u32 s%d, s%d, 4096" % (S_T1, S_T0))
        L = self.poll_begin()
        for k in range(8):
            a("buffer_load_dwordx4 %s, v%d, s[%d:%d], s%d offen offset:%d sc1" % (vr(G8 + 4 * k, 4), t + 4, SRD_WS, SRD_WS + 3, S_T0 if k < 4 else S_T1, 1024 * (k % 4)))
        a("s_waitcnt vmcnt(0)")
        for k in range(8): self.check4(t + 5, G8 + 4 * k, T, t + 6, k == 0)
        self.poll_end(L, t + 5)
        self.TS(5)
        for (x, y) in ((0, 1), (2, 3), (4, 5), (6, 7), (0, 2), (4, 6), (0, 4)):
            for j in range(4):
                a("v_add_f32 v%d, v%d, v%d" % (G8 + 4 * x + j, G8 + 4 * x + j, G8 + 4 * y + j))
        regs = [G8, G8 + 1, G8 + 2, G8 + 3]
        for r in regs:
            a("v_add_f32_dpp v%d, v%d, v%d row_ror:8 row_mask:0xf bank_mask:0xf" % (r, r, r))
        self.rowsum(regs, [B, B + 1, B + 2, B + 3])
        for j in range(4): a("v_lshlrev_b32 v%d, 16, v%d" % (XV + j, XV + j))
        for j in range(4): self.rbf16(G8 + j)
        for j in range(4): a("v_add_f32 v%d, v%d, v%d" % (HF + j, G8 + j, XV + j))
        for j in range(4): self.rbf16(HF + j)
        for j in range(4): a("v_or_b32 v%d, s%d, v%d" % (HF + j, S_TAG, HF + j))
        a("v_lshlrev_b32 v%d, 4, v%d" % (t + 2, t + 2))
        a("s_lshl_b32 s%d, s%d, 7" % (S_T0, S_U))
        a("s_add_u32 s%d, s%d, 0x%x" % (S_T0, S_T0, WS_HH))
        self.exec_set(0xFF, 0)
        a("buffer_store_dwordx4 %s, v%d, s[%d:%d], s%d offen sc1" % (vr(HF, 4), t + 2, SRD_WS, SRD_WS + 3, S_T0))
        self.exec_all()
        self.TS(6)
        a.label(Lx)
        self.end(t)
        a.hist = list(hist0)
        a.label("L_ch_WO")
        a.vm = []
        a("v_lshrrev_b32 v%d, 4, v0" % (t + 3))
        a("v_mul_u32_u24 v%d, 384, v%d" % (t + 3, t + 3))
        a("v_and_b32 v%d, 15, v0" % (t + 2))
        a("v_lshl_add_u32 v%d, v%d, 4, v%d" % (t + 2, t + 2, t + 3))
        a("s_mul_i32 s%d, s%d, 6144" % (S_T0, S_U))
        a("s_add_u32 s%d, s%d, 0x%x" % (S_T0, S_T0, WS_H2))
        a("s_add_u32 s%d, s%d, 3072" % (S_T1, S_T0))
        O = W; ML = W + 16
        L = self.poll_begin()
        for q in range(4):
            a("buffer_load_dwordx4 %s, v%d, s[%d:%d], s%d offen offset:%d sc1" % (vr(O + 4 * q, 4), t + 2, SRD_WS, SRD_WS + 3, S_T0 if q < 2 else S_T1, 1536 * (q % 2)))
        for q in range(4):
            a("buffer_load_dwordx4 %s, v%d, s[%d:%d], s%d offen offset:%d sc1" % (vr(ML + 4 * q, 4), t + 3, SRD_WS, SRD_WS + 3, S_T0 if q < 2 else S_T1, 1536 * (q % 2) + 256))
        a("s_waitcnt vmcnt(0)")
        for k in range(8): self.check4(t + 4, O + 4 * k, T, t + 5, k == 0)
        self.poll_end(L, t + 4)
        self.TS(6)
        mg = t + 4
        a("v_max3_f32 v%d, v%d, v%d, v%d" % (mg, ML, ML + 4, ML + 8))
        a("v_max_f32 v%d, v%d, v%d" % (mg, mg, ML + 12))
        self.rowsum([mg], [t + 5], "v_max_f32")
        a("v_and_b32 v%d, 0xfffff000, v%d" % (mg, mg))
        for q in range(4):
            a("v_and_b32 v%d, 0xfffff000, v%d" % (ML + 4 * q, ML + 4 * q))
        for q in range(4):
            a("v_sub_f32 v%d, v%d, v%d" % (ML + 4 * q, ML + 4 * q, mg))
        for q in range(4):
            a("v_exp_f32 v%d, v%d" % (ML + 4 * q, ML + 4 * q))
        Ls = t + 6
        a("v_mul_f32 v%d, v%d, v%d" % (Ls, ML, ML + 1))
        for q in range(1, 4):
            a("v_fmac_f32 v%d, v%d, v%d" % (Ls, ML + 4 * q, ML + 4 * q + 1))
        for j in range(4):
            a("v_mul_f32 v%d, v%d, v%d" % (acc + j, O + j, ML))
        for q in range(1, 4):
            for j in range(4):
                a("v_fmac_f32 v%d, v%d, v%d" % (acc + j, O + 4 * q + j, ML + 4 * q))
        self.rowsum([Ls, acc, acc + 1, acc + 2, acc + 3], [t + 7, B, B + 1, B + 2, B + 3])
        a("v_rcp_f32 v%d, v%d" % (Ls, Ls))
        for j in range(4):
            a("v_mul_f32 v%d, v%d, v%d" % (acc + j, acc + j, Ls))
        for j in range(4):
            a("v_cvt_pk_bf16_f32 v%d, v%d, v%d" % (acc + j, acc + j, acc + j))
        a("v_and_b32 v%d, 7, v0" % (t + 2))
        a("v_lshlrev_b32 v%d, 5, v%d" % (t + 2, t + 2))
        a("v_bfe_u32 v%d, v0, 3, 1" % (t + 3))
        a("v_lshl_add_u32 v%d, v%d, 4, v%d" % (t + 2, t + 3, t + 2))
        self.exec_set(0xFFFF, 0)
        a("ds_write_b128 v%d, %s offset:%d" % (t + 2, vr(acc, 4), L_T3))
        self.exec_all()
        self.TS(7)
        self.barrier()
        self.end(t)
        a.hist = list(hist0)
        a.label("L_ch_F")
        a.vm = []
        H = W
        a("v_lshlrev_b32 v%d, 4, v0" % (t + 2))
        a("s_mov_b32 s%d, 0x%x" % (S_T0, WS_HH))
        for j in range(4): a("v_mov_b32 v%d, 0" % (H + 8 + j))
        L = self.poll_begin()
        a("buffer_load_dwordx4 %s, v%d, s[%d:%d], s%d offen sc1" % (vr(H, 4), t + 2, SRD_WS, SRD_WS + 3, S_T0))
        a("buffer_load_dwordx4 %s, v%d, s[%d:%d], s%d offen offset:1024 sc1" % (vr(H + 4, 4), t + 2, SRD_WS, SRD_WS + 3, S_T0))
        self.exec_set(0xFFFF, 0)
        a("buffer_load_dwordx4 %s, v%d, s[%d:%d], s%d offen offset:2048 sc1" % (vr(H + 8, 4), t + 2, SRD_WS, SRD_WS + 3, S_T0))
        self.exec_all()
        a("s_waitcnt vmcnt(0)")
        self.check4(t + 3, H, T, t + 4, True)
        self.check4(t + 3, H + 4, T, t + 4, False)
        self.exec_set(0xFFFF, 0)
        self.check4(t + 3, H + 8, T, t + 4, False)
        self.exec_all()
        self.poll_end(L, t + 3)
        self.TS(6)
        for j in range(12):
            a("v_and_b32 v%d, 0xffff0000, v%d" % (H + j, H + j))
        self.ln_norm(list(range(H, H + 12)), t + 3, third_masked=True)
        for j in range(12):
            a("v_cvt_pk_bf16_f32 v%d, v%d, v%d" % (H + j, H + j, H + j))
        a("v_and_b32 v%d, 7, v0" % (t + 3))
        a("v_mul_u32_u24 v%d, 288, v%d" % (t + 3, t + 3))
        a("v_lshrrev_b32 v%d, 3, v0" % (t + 4))
        a("v_lshl_add_u32 v%d, v%d, 4, v%d" % (t + 3, t + 4, t + 3))
        a("ds_write_b128 v%d, %s offset:%d" % (t + 3, vr(H, 4), L_T2))
        a("ds_write_b128 v%d, %s offset:%d" % (t + 3, vr(H + 4, 4), L_T2 + 128))
        self.exec_set(0xFFFF, 0)
        a("ds_write_b128 v%d, %s offset:%d" % (t + 3, vr(H + 8, 4), L_T2 + 256))
        self.exec_all()
        self.TS(7)
        self.barrier()
        self.barrier()
        self.end(t)

    def ln_norm(self, regs, t, valid_lanes=None, third_masked=False):
        a = self.a
        s1 = t; s2 = t + 1; x = t + 2
        n = len(regs)
        a("v_add_f32 v%d, v%d, v%d" % (s1, regs[0], regs[1]))
        a("v_add_f32 v%d, v%d, v%d" % (s2, regs[2], regs[3]))
        for i in range(4, n, 2):
            a("v_add_f32 v%d, v%d, v%d" % (s1, s1, regs[i]))
            a("v_add_f32 v%d, v%d, v%d" % (s2, s2, regs[i + 1]))
        a("v_add_f32 v%d, v%d, v%d" % (s1, s1, s2))
        self.allsum([s1], [x])
        a("s_mov_b32 s%d, 0x%x" % (S_T0, f2u(1.0 / 576)))
        a("v_mul_f32 v%d, s%d, v%d" % (s1, S_T0, s1))
        if valid_lanes is not None:
            a("v_cmp_gt_u32 vcc, %d, v0" % valid_lanes)
            a("v_cndmask_b32 v%d, 0, v%d, vcc" % (t + 3, s1))
            mv = [t + 3] * n
        else:
            a("v_cmp_gt_u32 vcc, 16, v0")
            a("v_cndmask_b32 v%d, 0, v%d, vcc" % (t + 3, s1))
            mv = [s1] * 8 + [t + 3] * 4
        a("v_sub_f32 v%d, v%d, v%d" % (x, regs[0], mv[0]))
        a("v_mul_f32 v%d, v%d, v%d" % (s2, x, x))
        for i in range(1, n):
            xx = x if i % 2 == 0 else t + 4
            a("v_sub_f32 v%d, v%d, v%d" % (xx, regs[i], mv[i]))
            a("v_fmac_f32 v%d, v%d, v%d" % (s2, xx, xx))
        self.allsum([s2], [x])
        a("v_mul_f32 v%d, s%d, v%d" % (s2, S_T0, s2))
        self.rbf16(s2)
        a("v_add_f32 v%d, 0x%x, v%d" % (s2, f2u(1e-5), s2))
        self.rbf16(s2)
        a("v_sqrt_f32 v%d, v%d" % (s2, s2))
        self.rbf16(s2)
        a("v_rcp_f32 v%d, v%d" % (s2, s2))
        self.rbf16(s1)
        for i in range(n):
            a("v_sub_f32 v%d, v%d, v%d" % (regs[i], regs[i], s1))
        for i in range(n):
            self.rbf16(regs[i])
        for i in range(n):
            a("v_mul_f32 v%d, v%d, v%d" % (regs[i], regs[i], s2))

    def red(self):
        a = self.a
        a.label("L_red", keep=False)
        a.vm = []
        T = 1; t = 2; H = 20; G = 24; HF = 40
        a("s_sub_u32 s%d, s2, 208" % S_T0)
        a("s_mul_i32 s%d, s%d, 3" % (S_U, S_T0))
        a("s_cmp_eq_u32 s%d, 8" % S_WAVE)
        a("s_cselect_b32 s%d, 9, s%d" % (S_T1, S_WAVE))
        a("s_sub_u32 s%d, s%d, 9" % (S_T1, S_T1))
        a("s_add_u32 s%d, s%d, s%d" % (S_U, S_U, S_T1))
        a("s_lshr_b32 s%d, s%d, 3" % (S_T0, S_U))
        a("s_lshl_b32 s%d, s%d, 5" % (S_T3, S_T0))
        a("s_and_b32 s%d, s%d, 7" % (S_T1, S_U))
        a("s_add_u32 s%d, s%d, s%d" % (S_T3, S_T3, S_T1))
        a("s_lshl_b32 s%d, s%d, 1" % (S_T2, S_T3))
        a("s_mul_i32 s%d, s%d, 18432" % (S_BASE, S_T0))
        a("s_lshl_b32 s%d, s%d, 4" % (S_T1, S_T1))
        a("s_add_u32 s%d, s%d, s%d" % (S_BASE, S_BASE, S_T1))
        a("s_add_u32 s%d, s%d, 0x%x" % (S_BASE, S_BASE, WS_H4))
        a("s_add_u32 s%d, s%d, 8192" % (S_BASE + 1, S_BASE))
        a("s_add_u32 s%d, s%d, 16384" % (S_BASE2, S_BASE))
        a("v_mov_b32 v%d, 0" % t)
        a("v_lshlrev_b32 v%d, 7, v0" % (t + 1))
        a("s_waitcnt lgkmcnt(0)")
        self.srd(SRD_WS, P_WS, WS_SIZE)
        self.load_tag()
        self.srd(SRD_X, P_OUT, 1152)
        self.finish_tag(T)
        self.barrier()
        self.barrier()
        self.barrier()
        self.TS(4)
        a("s_lshl_b32 s%d, s%d, 4" % (S_T0, S_U))
        a("s_add_u32 s%d, s%d, 0x%x" % (S_T0, S_T0, WS_HH))
        L = self.poll_begin()
        a("buffer_load_dwordx4 %s, v%d, s[%d:%d], s%d offen sc1" % (vr(HF, 4), t, SRD_WS, SRD_WS + 3, S_T0))
        a("s_waitcnt vmcnt(0)")
        self.check4(t + 2, HF, T, t + 3, True)
        self.poll_end(L, t + 2)
        self.TS(6)
        for j in range(4): a("v_and_b32 v%d, 0xffff0000, v%d" % (HF + j, HF + j))
        for j in range(4): a("v_mov_b32 v%d, 0" % (G + 8 + j))
        L = self.poll_begin()
        a("buffer_load_dwordx4 %s, v%d, s[%d:%d], s%d offen sc1" % (vr(G, 4), t + 1, SRD_WS, SRD_WS + 3, S_BASE))
        a("buffer_load_dwordx4 %s, v%d, s[%d:%d], s%d offen sc1" % (vr(G + 4, 4), t + 1, SRD_WS, SRD_WS + 3, S_BASE + 1))
        self.exec_set(0xFFFF, 0)
        a("buffer_load_dwordx4 %s, v%d, s[%d:%d], s%d offen sc1" % (vr(G + 8, 4), t + 1, SRD_WS, SRD_WS + 3, S_BASE2))
        self.exec_all()
        a("s_waitcnt vmcnt(0)")
        self.check4(t + 2, G, T, t + 3, True)
        self.check4(t + 2, G + 4, T, t + 3, False)
        self.exec_set(0xFFFF, 0)
        self.check4(t + 2, G + 8, T, t + 3, False)
        self.exec_all()
        self.poll_end(L, t + 2)
        self.TS(7)
        for j in range(4):
            a("v_add_f32 v%d, v%d, v%d" % (G + j, G + j, G + 4 + j))
        for j in range(4):
            a("v_add_f32 v%d, v%d, v%d" % (G + j, G + j, G + 8 + j))
        self.allsum([G, G + 1, G + 2, G + 3], [t + 2, t + 3, t + 4, t + 5])
        for j in range(4): self.rbf16(G + j)
        for j in range(4): a("v_add_f32 v%d, v%d, v%d" % (G + j, G + j, HF + j))
        for j in range(4): a("v_cvt_pk_bf16_f32 v%d, v%d, v%d" % (G + j, G + j, G + j))
        self.exec_set(1, 0)
        for j in range(4):
            a("buffer_store_short v%d, v%d, s[%d:%d], s%d offen offset:%d" % (G + j, t, SRD_X, SRD_X + 3, S_T2, 16 * j))
        Lx = self.lab()
        a("s_cmp_eq_u32 s%d, 0" % S_U)
        a("s_cbranch_scc0 %s" % Lx)
        a("v_mov_b32 v%d, s%d" % (t + 2, S_TAG))
        a("buffer_store_dword v%d, v%d, s[%d:%d], 0 offen offset:%d" % (t + 2, t, SRD_WS, SRD_WS + 3, WS_EPOCH))
        a.label(Lx)
        self.TS(8)
        self.end(t + 2)

if __name__ == "__main__":
    import argparse
    p = argparse.ArgumentParser()
    p.add_argument("-o", default="sequential_preLN__sliding_block_cached__glu_gated_bilinear__decode.s")
    p.add_argument("--ts", action="store_true")
    p.add_argument("--wk", type=int, default=3)
    p.add_argument("--pre", type=int, default=8)
    p.add_argument("--ww", type=int, default=2)
    p.add_argument("--wwo", type=int, default=6)
    p.add_argument("--fpre", type=int, default=1)
    p.add_argument("--wopre", type=int, default=4)
    p.add_argument("--knat", action="store_true")
    p.add_argument("--noq", action="store_true")
    p.add_argument("--amap", type=int, default=0)
    args = p.parse_args()
    g = Gen(ts=args.ts, wk=args.wk, pre=args.pre, ww=args.ww, wwo=args.wwo, fpre=args.fpre, wopre=args.wopre, knat=args.knat, noq=args.noq, amap=args.amap)
    txt = g.build()
    hdr = open("sequential_preLN__sliding_block_cached__glu_gated_bilinear__decode.s.ref").read().split("; Override launch")[0]
    open(args.o, "w").write(hdr + txt)
    print("wrote", args.o, "auto nops:", g.a.nops, "vmax", g.vmax)
```

```python
import sys
sys.path.insert(0, "gen")
from asmlib import *
import struct
def f2u(x): return struct.unpack("<I", struct.pack("<f", x))[0]

NAME = "sequential_preLN__sliding_block_cached__glu_gated_bilinear__decode_kernel"

WS_EPOCH = 0
WS_H1   = 0x1000
WS_H2   = 0x20000
WS_H3   = 0x80000
WS_HH   = 0xA8000
WS_H4   = 0xB0000
WS_HX   = 0x110000
WS_TS   = 0x180000
WS_SIZE = 0x200000

L_QT = 0x000
L_MX = 0x200
L_LS = 0x280
L_ST = 0x300
L_OP = 0x400
L_T1 = 0x2800
L_T2 = 0x2C00
L_T3 = 0x3600
L_T4 = 0x3700
L_GP = 0x3800
L_CS = 0x4C00
LDS_BYTES = 0x6000

TAGMASK = 0xFFF
C1 = 0.08838834764831845 * 1.4426950408889634
NWAVES = 10
POLL_MAX = 200000

S_WAVE = 3; S_X = 4; S_G = 5; S_J = 6; S_S = 7
P_X = 8; P_K = 10; P_V = 12; P_WQ = 14; P_WO = 16; P_BX = 18; P_WG = 20; P_WU = 22
P_WD = 24; P_OUT = 26; P_DBG = 28; P_WS = 30
SRD_K = 32; SRD_V = 36; SRD_WS = 40; SRD_X = 44
S_TAG = 48; S_MASK = 49; S_T0 = 50; S_T1 = 51; S_T2 = 52; S_T3 = 53; S_CNT = 54; S_KV = 55; S_KV2 = 56
S_C1 = 57
S_BASE = 58; S_STR = 60; S_U = 62; S_T9 = 63; S_BASE2 = 64; S_EP = 66
S_A0 = 67; S_A1 = 68; S_A2 = 69
TSB = 70

class Gen:
    def __init__(self, ts=False, wk=3, wkwo=5, ww=3, fpre=1, noq=False, prio=True, offset_out=0.0, knat=False, wlate=False, pollsleep=0, pipe=True, chfirst=True, presleep=0, wopre=4, womid=8, codepf=0):
        self.a = Asm(); self.ts = ts; self.knat = knat; self.wlate = wlate; self.pollsleep = pollsleep; self.pipe = pipe; self.chfirst = chfirst; self.presleep = presleep; self.wopre = wopre; self.womid = womid; self.codepf = codepf
        self.wk = wk; self.wkwo = wkwo; self.ww = ww; self.fpre = fpre; self.noq = noq; self.prio = prio
        self.offset_out = offset_out
        self.nlab = 0; self.vmax = 0
    def lab(self, p="L"):
        self.nlab += 1
        return "%s%d" % (p, self.nlab)
    def TS(self, i):
        if self.ts:
            self.a("s_memtime s[%d:%d]" % (TSB + 2 * i, TSB + 2 * i + 1))
            if i == 0: self.a("s_memrealtime s[90:91]")
    def ts_init(self):
        if self.ts:
            for i in range(10): self.a("s_mov_b64 s[%d:%d], 0" % (TSB + 2 * i, TSB + 2 * i + 1))
    def ts_flush(self, vt):
        if not self.ts: return
        a = self.a
        a("s_memtime s[92:93]\ns_memrealtime s[94:95]\ns_waitcnt lgkmcnt(0)")
        a("s_mul_i32 s%d, s2, 12" % S_T0)
        a("s_add_u32 s%d, s%d, s%d" % (S_T0, S_T0, S_WAVE))
        a("s_lshl_b32 s%d, s%d, 6" % (S_T0, S_T0))
        a("s_add_u32 s%d, s%d, %d" % (S_T0, S_T0, WS_TS))
        a("s_mov_b32 exec_lo, 1\ns_mov_b32 exec_hi, 0")
        a("v_mov_b32 v%d, 0" % vt)
        regs = [TSB + 2 * i for i in range(10)] + [90, 92, 94]
        for i, r in enumerate(regs):
            a("v_mov_b32 v%d, s%d" % (vt + 1, r))
            a("buffer_store_dword v%d, v%d, s[%d:%d], s%d offen offset:%d" % (vt + 1, vt, SRD_WS, SRD_WS + 3, S_T0, 4 * i))
            a("s_nop 0")
    def end(self, vt=4):
        self.ts_flush(vt)
        self.a("s_endpgm")

    def srd(self, d, p, nrec):
        a = self.a
        a("s_mov_b32 s%d, s%d" % (d, p))
        a("s_and_b32 s%d, s%d, 0xffff" % (d + 1, p + 1))
        a("s_mov_b32 s%d, 0x%x" % (d + 2, nrec))
        a("s_mov_b32 s%d, 0x20000" % (d + 3))
    def load_tag(self):
        self.a("s_load_dword s%d, s[%d:%d], 0x%x" % (S_EP, P_WS, P_WS + 1, WS_EPOCH))
    def finish_tag(self, vT):
        a = self.a
        a("s_waitcnt lgkmcnt(0)")
        a("s_add_u32 s%d, s%d, 1" % (S_TAG, S_EP))
        a("s_and_b32 s%d, s%d, 0x%x" % (S_TAG, S_TAG, TAGMASK))
        a("s_movk_i32 s%d, 0x%x" % (S_MASK, TAGMASK))
        a("v_mov_b32 v%d, s%d" % (vT, S_TAG))
    def masks(self, M, t0, t1):
        a = self.a
        a("v_and_b32 v%d, 1, v0" % t0)
        a("v_lshlrev_b32 v%d, 4, v%d" % (t0, t0))
        a("v_mov_b32 v%d, 0xffff" % t1)
        a("v_lshlrev_b32 v%d, v%d, v%d" % (t0, t0, t1))
        a("v_bfe_u32 v%d, v0, 1, 2" % t1)
        for j in range(4):
            a("v_cmp_eq_u32 vcc, %d, v%d" % (j, t1))
            a("v_cndmask_b32 v%d, 0, v%d, vcc" % (M + j, t0))
    def rho(self, dst, t0):
        a = self.a
        a("v_lshrrev_b32 v%d, 4, v0" % t0)
        a("v_bfe_u32 v%d, v0, 3, 1" % dst)
        a("v_lshl_add_u32 v%d, v%d, 1, v%d" % (dst, t0, dst))
    def bbuild(self, B, x, M):
        for j in range(4): self.a("v_and_b32 v%d, v%d, v%d" % (B + j, x, M + j))
    def mfma(self, D, A, B, C):
        c = "0" if C is None else vr(C, 4)
        self.a("v_mfma_f32_16x16x32_bf16 %s, %s, %s, %s" % (vr(D, 4), vr(A, 4), vr(B, 4), c))
    def gemv(self, acc, acc2, Aregs, Xregs, M, Bs, waits=None, final=True):
        a = self.a; n = len(Aregs)
        self.bbuild(Bs[0], Xregs[0], M)
        if n > 1: self.bbuild(Bs[1], Xregs[1], M)
        for t in range(n):
            if t + 2 < n: self.bbuild(Bs[(t + 2) % 3], Xregs[t + 2], M)
            if waits and waits[t]: waits[t]()
            d = acc if t % 2 == 0 else acc2
            self.mfma(d, Aregs[t], Bs[t % 3], None if t < 2 else d)
        if n > 1 and final:
            for j in range(4): a("v_add_f32 v%d, v%d, v%d" % (acc + j, acc + j, acc2 + j))
    def merge(self, D, Y, Z):
        a = self.a
        for j in range(4): a("v_mov_b32_dpp v%d, v%d row_ror:8 row_mask:0xf bank_mask:0xf" % (Y + j, D + j))
        for j in range(4): a("v_permlane32_swap_b32 v%d, v%d" % (Y + j, Z + j))
        for j in range(4): a("v_add_f32 v%d, v%d, v%d" % (D + j, D + j, Z + j))
    def tag4(self, D, vT, n=4):
        for j in range(n): self.a("v_bfi_b32 v%d, s%d, v%d, v%d" % (D + j, S_MASK, vT, D + j))
    def check4(self, bad, D, vT, tmp, first):
        a = self.a
        if first:
            a("v_bitop3_b32 v%d, v%d, v%d, v%d bitop3:0x7e" % (bad, D, D + 1, vT))
            a("v_bitop3_b32 v%d, v%d, v%d, v%d bitop3:0x7e" % (tmp, D + 2, D + 3, vT))
            a("v_or_b32 v%d, v%d, v%d" % (bad, bad, tmp))
        else:
            a("v_bitop3_b32 v%d, v%d, v%d, v%d bitop3:0x7e" % (tmp, D, D + 1, vT))
            a("v_bitop3_b32 v%d, v%d, v%d, v%d bitop3:0x7e" % (tmp + 1, D + 2, D + 3, vT))
            a("v_or3_b32 v%d, v%d, v%d, v%d" % (bad, bad, tmp, tmp + 1))
    def poll_begin(self):
        L = self.lab("Lp")
        self.a("s_mov_b32 s%d, 0" % S_CNT)
        self.a.label(L)
        return L
    def poll_end(self, L, bad):
        a = self.a
        Lok = self.lab("Lok")
        a("v_and_b32 v%d, s%d, v%d" % (bad, S_MASK, bad))
        a("v_cmp_ne_u32 vcc, 0, v%d" % bad)
        a("s_cbranch_vccz %s" % Lok)
        a("s_add_u32 s%d, s%d, 1" % (S_CNT, S_CNT))
        a("s_cmp_lt_u32 s%d, %d" % (S_CNT, POLL_MAX))
        a("s_cbranch_scc1 %s" % L)
        a.label(Lok)
    def dppstep(self, regs, mod, op="v_add_f32"):
        for r in regs: self.a("%s_dpp v%d, v%d, v%d %s row_mask:0xf bank_mask:0xf" % (op, r, r, r, mod))
    def allsum(self, regs, t, op="v_add_f32"):
        for mod in ("quad_perm:[1,0,3,2]", "quad_perm:[2,3,0,1]", "row_half_mirror", "row_mirror"):
            self.dppstep(regs, mod, op)
        self.rowsum(regs, t, op)
    def rowsum(self, regs, t, op="v_add_f32"):
        a = self.a
        for sw in ("v_permlane16_swap_b32", "v_permlane32_swap_b32"):
            for r, x in zip(regs, t): a("v_mov_b32 v%d, v%d" % (x, r))
            for r, x in zip(regs, t): a("%s v%d, v%d" % (sw, x, r))
            for r, x in zip(regs, t): a("%s v%d, v%d, v%d" % (op, r, r, x))
    def rbf16(self, r):
        self.a("v_cvt_pk_bf16_f32 v%d, v%d, v%d" % (r, r, r))
        self.a("v_and_b32 v%d, 0xffff0000, v%d" % (r, r))
    def exec_set(self, lo, hi):
        self.a("s_mov_b32 exec_lo, 0x%x" % lo)
        self.a("s_mov_b32 exec_hi, 0x%x" % hi)
    def exec_all(self): self.a("s_mov_b64 exec, -1")
    def barrier(self):
        self.a("s_waitcnt lgkmcnt(0)")
        self.a("s_barrier")

    def build(self):
        a = self.a
        a.raw("; @launch grid=(256,1,1) block=(%d,1,1) lds=%d" % (NWAVES * 64, LDS_BYTES))
        a.raw('.amdgcn_target "amdgcn-amd-amdhsa--gfx950"')
        a.raw(".text\n.globl %s\n.p2align 8\n.type %s,@function\n%s:" % (NAME, NAME, NAME))
        a("s_cmp_ge_u32 s2, 256")
        a("s_cbranch_scc1 L_end")
        a("s_load_dwordx16 s[8:23], s[0:1], 0")
        a("s_load_dwordx8 s[24:31], s[0:1], 64")
        self.ts_init()
        self.TS(0)
        a("v_lshrrev_b32 v1, 6, v0")
        a("v_and_b32 v0, 63, v0")
        a("v_readfirstlane_b32 s%d, v1" % S_WAVE)
        a("s_and_b32 s%d, s2, 7" % S_X)
        a("s_lshr_b32 s%d, s2, 3" % S_G)
        a("s_and_b32 s%d, s%d, 1" % (S_S, S_G))
        a("s_lshl_b32 s%d, s%d, 1" % (S_J, S_X))
        a("s_or_b32 s%d, s%d, s%d" % (S_S, S_S, S_J))
        a("s_lshr_b32 s%d, s%d, 1" % (S_J, S_G))
        a("s_cmp_eq_u32 s%d, 9" % S_WAVE)
        a("s_cbranch_scc0 L_notch")
        self.ch_prologue()
        a.label("L_notch", keep=False)
        a("s_cmp_eq_u32 s%d, 8" % S_WAVE)
        a("s_cbranch_scc1 L_aux")
        self.att()
        a.label("L_end")
        a("s_endpgm")
        self.aux()
        self.ch()
        a.label("L_codeend")
        nv = 168
        assert self.vmax <= nv
        a.raw(""".section .rodata,"a"
.p2align 6
.amdhsa_kernel %s
  .amdhsa_next_free_vgpr %d
  .amdhsa_next_free_sgpr 96
  .amdhsa_accum_offset %d
  .amdhsa_group_segment_fixed_size 0
  .amdhsa_kernarg_size 96
  .amdhsa_user_sgpr_count 2
  .amdhsa_user_sgpr_kernarg_segment_ptr 1
  .amdhsa_system_sgpr_workgroup_id_x 1
.end_amdhsa_kernel""" % (NAME, nv, nv))
        return a.text()

    def unit_ids(self):
        a = self.a
        L1 = self.lab(); L2 = self.lab()
        a("s_cmp_lt_u32 s2, 144")
        a("s_cbranch_scc0 %s" % L1)
        a("s_lshr_b32 s%d, s%d, 1" % (S_T0, S_G))
        a("s_mul_i32 s%d, s%d, 9" % (S_T1, S_X))
        a("s_add_u32 s%d, s%d, s%d" % (S_T0, S_T0, S_T1))
        a("s_lshl_b32 s%d, s%d, 1" % (S_T0, S_T0))
        a("s_and_b32 s%d, s%d, 1" % (S_T1, S_G))
        a("s_add_u32 s%d, s%d, s%d" % (S_U, S_T0, S_T1))
        a("s_branch %s" % L2)
        a.label(L1)
        a("s_sub_u32 s%d, s2, 144" % S_U)
        a.label(L2)

    def sregs(self):
        R = dict(T=1, koff=2, voff=3, t=4, M=12, qB=16, B=20, B2=24, acc=28, acc2=32, wa=36, wb=38, m=39,
                 K=40, V=72, DQ=104, WO=136)
        R["Dn"] = R["DQ"]; R["X"] = R["DQ"] + 16
        self.vmax = max(self.vmax, 168)
        return R

    def waddr_F(self, R):
        a = self.a
        t0 = R["t"]; t2 = t0 + 2; vA = R["wa"]; vB = R["wb"]
        self.rho(t0, t2)
        a("s_movk_i32 s%d, 9216" % S_T1)
        a("v_mul_lo_u32 v%d, v%d, s%d" % (vA, t0, S_T1))
        a("v_and_b32 v%d, 7, v0" % t2)
        a("v_lshl_add_u32 v%d, v%d, 4, v%d" % (vA, t2, vA))
        a("s_and_b32 s%d, s%d, 1" % (S_T0, S_U))
        a("s_mul_i32 s%d, s%d, 288" % (S_T0, S_T0))
        a("s_lshl_b32 s%d, s%d, 5" % (S_T2, S_T9))
        a("s_add_u32 s%d, s%d, s%d" % (S_T0, S_T0, S_T2))
        a("s_mul_i32 s%d, s%d, 9216" % (S_T0, S_T0))
        a("s_lshr_b32 s%d, s%d, 1" % (S_T2, S_U))
        a("s_lshl_b32 s%d, s%d, 7" % (S_T2, S_T2))
        a("s_add_u32 s%d, s%d, s%d" % (S_T0, S_T0, S_T2))
        a("s_add_u32 s%d, s%d, s%d" % (S_BASE, P_WG, S_T0))
        a("s_addc_u32 s%d, s%d, 0" % (S_BASE + 1, P_WG + 1))
        a("s_add_u32 s%d, s%d, s%d" % (S_STR, P_WU, S_T0))
        a("s_addc_u32 s%d, s%d, 0" % (S_STR + 1, P_WU + 1))
        a("v_mul_u32_u24 v%d, 1152, v%d" % (vB, t0))
        a("v_lshl_add_u32 v%d, v%d, 4, v%d" % (vB, t2, vB))
        a("s_mul_i32 s%d, s%d, %d" % (S_T0, S_U, 32 * 1152))
        a("s_lshl_b32 s%d, s%d, 7" % (S_T1, S_T9))
        a("s_add_u32 s%d, s%d, s%d" % (S_T0, S_T0, S_T1))
        a("s_add_u32 s%d, s%d, s%d" % (S_BASE2, P_WD, S_T0))
        a("s_addc_u32 s%d, s%d, 0" % (S_BASE2 + 1, P_WD + 1))
    def waddr_WO(self, R):
        a = self.a
        t0 = R["t"]; t2 = t0 + 2; vB = R["wb"]
        self.rho(t0, t2)
        a("v_mul_u32_u24 v%d, 1152, v%d" % (vB, t0))
        a("v_and_b32 v%d, 7, v0" % t2)
        a("v_lshl_add_u32 v%d, v%d, 4, v%d" % (vB, t2, vB))
        a("s_mul_i32 s%d, s%d, %d" % (S_T0, S_U, 64 * 1152))
        a("s_lshl_b32 s%d, s%d, 7" % (S_T1, S_T9))
        a("s_add_u32 s%d, s%d, s%d" % (S_T0, S_T0, S_T1))
        a("s_add_u32 s%d, s%d, s%d" % (S_BASE2, P_WO, S_T0))
        a("s_addc_u32 s%d, s%d, 0" % (S_BASE2 + 1, P_WO + 1))

    def kv_list(self, R):
        a = self.a; L = []
        for nm, srd, off in (("K", SRD_K, R["koff"]), ("V", SRD_V, R["voff"])):
            for t in range(8):
                so = S_KV if t < 4 else S_KV2
                L.append(("%s%d" % (nm, t), lambda t=t, so=so, nm=nm, srd=srd, off=off: a.vmem("buffer_load_dwordx4 %s, v%d, s[%d:%d], s%d offen offset:%d nt" % (vr(R[nm] + 4 * t, 4), off, srd, srd + 3, so, (t % 4) * 1024), "%s%d" % (nm, t))))
        return L
    def wo_list(self, R):
        a = self.a; L = []
        for t in range(8):
            def f(t=t):
                a.vmem("global_load_dwordx4 %s, v%d, s[%d:%d] nt" % (vr(R["WO"] + 4 * t, 4), R["wb"], S_BASE2, S_BASE2 + 1), "W%d" % t)
                if t < 7:
                    a("s_add_u32 s%d, s%d, 9216" % (S_BASE2, S_BASE2))
                    a("s_addc_u32 s%d, s%d, 0" % (S_BASE2 + 1, S_BASE2 + 1))
            L.append(("W%d" % t, f))
        return L
    def f_list(self, R):
        a = self.a; L = []
        for t in range(4):
            for m, base in ((0, S_BASE), (1, S_STR)):
                def f(t=t, m=m, base=base):
                    a.vmem("global_load_dwordx4 %s, v%d, s[%d:%d] nt" % (vr(R["WO"] + 16 * m + 4 * t, 4), R["wa"], base, base + 1), "W%d" % (4 * m + t))
                    if t < 3:
                        a("s_add_u32 s%d, s%d, 73728" % (base, base))
                        a("s_addc_u32 s%d, s%d, 0" % (base + 1, base + 1))
                L.append(("W%d" % (4 * m + t), f))
        for t in range(4):
            def f(t=t):
                a.vmem("global_load_dwordx4 %s, v%d, s[%d:%d] nt" % (vr(R["K"] + 4 * t, 4), R["wb"], S_BASE2, S_BASE2 + 1), "D%d" % t)
                if t < 3:
                    a("s_add_u32 s%d, s%d, 9216" % (S_BASE2, S_BASE2))
                    a("s_addc_u32 s%d, s%d, 0" % (S_BASE2 + 1, S_BASE2 + 1))
            L.append(("D%d" % t, f))
        return L
    def run_list(self, lst, nxt, upto, win):
        a = self.a
        while nxt < upto:
            j = nxt - win
            if j >= 0 and not a.vm_done(lst[j][0]): a.wait_vm(lst[j][0])
            lst[nxt][1](); nxt += 1
        return nxt

    def base_init(self, R):
        a = self.a
        a("s_mov_b64 s[%d:%d], s[%d:%d]" % (S_BASE, S_BASE + 1, P_WG, P_WG + 1))
        a("s_mov_b64 s[%d:%d], s[%d:%d]" % (S_STR, S_STR + 1, P_WU, P_WU + 1))
        a("s_mov_b64 s[%d:%d], s[%d:%d]" % (S_BASE2, S_BASE2 + 1, P_WD, P_WD + 1))
        a("v_mov_b32 v%d, 0" % R["wa"])
        a("v_mov_b32 v%d, 0" % R["wb"])

    def role_branch(self, fF, fWO, fRED=None):
        a = self.a
        LW = self.lab(); LJ = self.lab(); LR = self.lab()
        h0 = list(a.hist); vm0 = list(a.vm)
        a("s_cmp_lt_u32 s2, 144")
        a("s_cbranch_scc0 %s" % LW)
        fF()
        a("s_branch %s" % LJ)
        a.label(LW); a.hist = list(h0); a.vm = list(vm0)
        a("s_cmp_lt_u32 s2, 208")
        a("s_cbranch_scc0 %s" % LJ)
        fWO()
        a.label(LJ)
        a.vm = list(vm0)
        a("s_nop 1")

    def att(self):
        a = self.a
        R = self.sregs()
        a.vm = []
        t = R["t"]
        a("v_bfe_u32 v%d, v0, 2, 2" % t)
        a("v_lshlrev_b32 v%d, 8, v%d" % (t, t))
        a("v_lshrrev_b32 v%d, 4, v0" % (t + 1))
        a("v_lshl_add_u32 v%d, v%d, 6, v%d" % (t, t + 1, t))
        a("v_and_b32 v%d, 3, v0" % (t + 1))
        a("v_lshl_add_u32 v%d, v%d, 4, v%d" % (R["koff"], t + 1, t))
        a("v_lshlrev_b32 v%d, 4, v0" % R["voff"])
        a("s_lshl_b32 s%d, s%d, 24" % (S_KV, S_J))
        a("s_lshl_b32 s%d, s%d, 16" % (S_T0, S_S))
        a("s_add_u32 s%d, s%d, s%d" % (S_KV, S_KV, S_T0))
        a("s_lshl_b32 s%d, s%d, 13" % (S_T0, S_WAVE))
        a("s_add_u32 s%d, s%d, s%d" % (S_KV, S_KV, S_T0))
        a("s_add_u32 s%d, s%d, 0xF00000" % (S_KV, S_KV))
        a("s_add_u32 s%d, s%d, 4096" % (S_KV2, S_KV))
        a("s_mov_b32 s%d, s%d" % (S_T9, S_WAVE))
        a("s_waitcnt lgkmcnt(0)")
        self.srd(SRD_K, P_K, 0x10000000)
        self.srd(SRD_V, P_V, 0x10000000)
        lst = self.kv_list(R)
        win = self.wk
        if self.chfirst: a("s_barrier")
        nxt = self.run_list(lst, 0, win, win)
        self.unit_ids()
        self.srd(SRD_WS, P_WS, WS_SIZE)
        self.load_tag()
        self.masks(R["M"], t, t + 1)
        self.base_init(R)
        self.role_branch(lambda: self.waddr_F(R), lambda: self.waddr_WO(R))
        a("v_bfe_u32 v%d, v0, 3, 1" % t)
        a("v_lshlrev_b32 v%d, 5, v%d" % (t + 3, t))
        a("s_lshl_b32 s%d, s%d, 2" % (S_T0, S_WAVE))
        a("v_add_u32 v%d, s%d, v%d" % (t + 3, S_T0, t + 3))
        a("v_lshlrev_b32 v%d, 8, v%d" % (t, t))
        a("v_lshrrev_b32 v%d, 4, v0" % (t + 1))
        a("v_lshl_add_u32 v%d, v%d, 6, v%d" % (t, t + 1, t))
        a("v_and_b32 v%d, 3, v0" % (t + 1))
        a("v_lshl_add_u32 v%d, v%d, 4, v%d" % (t + 2, t + 1, t))
        a("s_lshl_b32 s%d, s%d, 10" % (S_T0, S_WAVE))
        a("v_add_u32 v%d, s%d, v%d" % (t + 4, S_T0, R["voff"]))
        a("v_lshrrev_b32 v%d, 3, v0" % t)
        a("s_and_b32 s%d, s%d, 1" % (S_T0, S_WAVE))
        a("s_lshl_b32 s%d, s%d, 5" % (S_A2, S_T0))
        a("v_lshlrev_b32 v%d, 2, v%d" % (t + 6, t))
        a("v_add_u32 v%d, s%d, v%d" % (t + 6, S_A2, t + 6))
        a("v_lshlrev_b32 v%d, 10, v%d" % (t, t))
        a("v_and_b32 v%d, 7, v0" % (t + 1))
        a("v_lshlrev_b32 v%d, 4, v%d" % (t + 7, t + 1))
        a("v_add_u32 v%d, v%d, v%d" % (t, t, t + 7))
        a("s_lshl_b32 s%d, s%d, 7" % (S_T1, S_WAVE))
        a("v_add_u32 v%d, s%d, v%d" % (t + 5, S_T1, t))
        a("s_lshl_b32 s%d, s%d, 1" % (S_T1, S_T0))
        a("s_lshr_b32 s%d, s%d, 2" % (S_T2, S_WAVE))
        a("s_add_u32 s%d, s%d, s%d" % (S_T1, S_T1, S_T2))
        a("s_lshl_b32 s%d, s%d, 2" % (S_T2, S_J))
        a("s_add_u32 s%d, s%d, s%d" % (S_T1, S_T1, S_T2))
        a("s_mul_i32 s%d, s%d, 6144" % (S_T1, S_T1))
        a("s_mul_i32 s%d, s%d, 384" % (S_T2, S_S))
        a("s_add_u32 s%d, s%d, s%d" % (S_T1, S_T1, S_T2))
        a("s_add_u32 s%d, s%d, 0x%x" % (S_A0, S_T1, WS_H2))
        a("s_bfe_u32 s%d, s%d, 0x10001" % (S_T2, S_WAVE))
        a("s_lshl_b32 s%d, s%d, 7" % (S_T2, S_T2))
        a("s_add_u32 s%d, s%d, s%d" % (S_A1, S_A0, S_T2))
        a("s_mov_b32 s%d, 0x%x" % (S_C1, f2u(C1)))
        a("v_mov_b32 v%d, s%d" % (R["wa"] + 1, S_A2))
        nxt = self.run_list(lst, nxt, len(lst), win)
        self.finish_tag(R["T"])
        self.TS(2)
        self.barrier()
        self.TS(3)
        a("ds_read_b128 %s, v%d offset:%d" % (vr(R["qB"], 4), t + 2, L_QT))
        if not a.vm_done("K7"): a.wait_vm("K7")
        a("s_waitcnt lgkmcnt(0)")
        DQ = R["DQ"]
        for i in range(8): self.mfma(DQ + 4 * i, R["K"] + 4 * i, R["qB"], None)
        S = [DQ + 4 * i for i in range(8)]
        for step in range(4):
            for i in range(8):
                if step == 0: a("v_mov_b32_dpp v%d, v%d quad_perm:[0,0,0,0] row_mask:0xf bank_mask:0xf" % (S[i], S[i]))
                else: a("v_add_f32_dpp v%d, v%d, v%d quad_perm:[%d,%d,%d,%d] row_mask:0xf bank_mask:0xf" % (S[i], S[i] + step, S[i], step, step, step, step))
        m = R["m"]
        a("v_max3_f32 v%d, v%d, v%d, v%d" % (m, S[0], S[1], S[2]))
        a("v_max3_f32 v%d, v%d, v%d, v%d" % (t, S[3], S[4], S[5]))
        a("v_max3_f32 v%d, v%d, v%d, v%d" % (m, m, S[6], S[7]))
        a("v_max_f32 v%d, v%d, v%d" % (m, m, t))
        self.rowsum([m], [t], "v_max_f32")
        a("v_mul_f32 v%d, s%d, v%d" % (m, S_C1, m))
        a("v_and_b32 v%d, 0xfffff000, v%d" % (m, m))
        for i in range(8): a("v_fma_f32 v%d, v%d, s%d, -v%d" % (S[i], S[i], S_C1, m))
        for i in range(8): a("v_exp_f32 v%d, v%d" % (S[i], S[i]))
        for i in range(8): a("v_cvt_pk_bf16_f32 v%d, v%d, v%d" % (S[i] + 1, S[i], S[i]))
        self.TS(4)
        waits = []
        for tt in range(8):
            tag = "V%d" % tt
            waits.append((lambda tag=tag: (None if a.vm_done(tag) else a.wait_vm(tag))))
        self.gemv(R["acc"], R["acc2"], [R["V"] + 4 * i for i in range(8)], [S[i] + 1 for i in range(8)], R["M"], [R["B"], R["B2"], R["qB"]], waits, final=False)
        a("v_add_f32 v%d, v%d, v%d" % (S[0], S[0], S[1]))
        a("v_add_f32 v%d, v%d, v%d" % (S[2], S[2], S[3]))
        a("v_add_f32 v%d, v%d, v%d" % (S[4], S[4], S[5]))
        a("v_add_f32 v%d, v%d, v%d" % (S[6], S[6], S[7]))
        a("v_add_f32 v%d, v%d, v%d" % (S[0], S[0], S[2]))
        a("v_add_f32 v%d, v%d, v%d" % (S[4], S[4], S[6]))
        a("v_add_f32 v%d, v%d, v%d" % (S[0], S[0], S[4]))
        self.rowsum([S[0]], [t])
        for j in range(4): a("v_add_f32 v%d, v%d, v%d" % (R["acc"] + j, R["acc"] + j, R["acc2"] + j))
        a("ds_write_b128 v%d, %s offset:%d" % (t + 4, vr(R["acc"], 4), L_OP))
        self.exec_set(0x101, 0)
        a("ds_write_b32 v%d, v%d offset:%d" % (t + 3, m, L_MX))
        a("ds_write_b32 v%d, v%d offset:%d" % (t + 3, S[0], L_LS))
        self.exec_all()
        assert not a.vm, a.vm
        self.role_branch(lambda: self.run_list(self.f_list(R), 0, self.fpre, 99), lambda: self.run_list(self.wo_list(R), 0, 8, 99))
        self.TS(5)
        self.barrier()
        X = R["X"]; B = R["B"]; B2 = R["B2"]
        a("ds_read_b128 %s, v%d offset:%d" % (vr(X, 4), t + 5, L_OP))
        a("ds_read_b32 v%d, v%d offset:%d" % (X + 5, t + 6, L_MX))
        a("ds_read_b32 v%d, v%d offset:%d" % (X + 4, t + 6, L_LS))
        a("ds_read_b128 %s, v%d offset:%d" % (vr(B, 4), R["wa"] + 1, L_MX))
        a("ds_read_b128 %s, v%d offset:%d" % (vr(B2, 4), R["wa"] + 1, L_MX + 16))
        a("s_waitcnt lgkmcnt(0)")
        a("v_max3_f32 v%d, v%d, v%d, v%d" % (m, B, B + 1, B + 2))
        a("v_max3_f32 v%d, v%d, v%d, v%d" % (t + 1, B + 3, B2, B2 + 1))
        a("v_max3_f32 v%d, v%d, v%d, v%d" % (m, m, B2 + 2, B2 + 3))
        a("v_max_f32 v%d, v%d, v%d" % (m, m, t + 1))
        a("v_sub_f32 v%d, v%d, v%d" % (X + 5, X + 5, m))
        a("v_exp_f32 v%d, v%d" % (X + 5, X + 5))
        regs = [X, X + 1, X + 2, X + 3, X + 4]
        for r in regs: a("v_mul_f32 v%d, v%d, v%d" % (r, r, X + 5))
        self.dppstep(regs, "row_ror:8")
        self.rowsum(regs, [B, B + 1, B + 2, B + 3, B2])
        self.tag4(X, R["T"])
        self.exec_set(0xFF, 0)
        a("buffer_store_dwordx4 %s, v%d, s[%d:%d], s%d offen sc1" % (vr(X, 4), t + 7, SRD_WS, SRD_WS + 3, S_A1))
        Lml = self.lab()
        a("s_bitcmp1_b32 s%d, 1" % S_WAVE)
        a("s_cbranch_scc1 %s" % Lml)
        a("v_bfi_b32 v%d, s%d, v%d, v%d" % (B2, S_MASK, R["T"], m))
        a("v_bfi_b32 v%d, s%d, v%d, v%d" % (B2 + 1, S_MASK, R["T"], X + 4))
        self.exec_set(1, 0)
        a("buffer_store_dwordx2 %s, v%d, s[%d:%d], s%d offen offset:256 sc1" % (vr(B2, 2), t + 7, SRD_WS, SRD_WS + 3, S_A0))
        a.label(Lml)
        self.exec_all()
        self.TS(1)
        a("s_cmp_lt_u32 s2, 144")
        a("s_cbranch_scc1 L_F_tail")
        a("s_cmp_lt_u32 s2, 208")
        a("s_cbranch_scc1 L_WO_tail")
        h0 = list(a.hist)
        a.label("L_RED_tail"); a.vm = []
        self.red_tail(R)
        a.hist = list(h0)
        a.label("L_WO_tail"); a("s_nop 1"); a.vm = ["W%d" % i for i in range(8)]
        self.wo_tail(R)
        a.hist = list(h0)
        a.label("L_F_tail"); a("s_nop 1")
        wl = self.f_list(R)
        a.vm = [wl[i][0] for i in range(self.fpre)]
        a("s_barrier")
        self.f_tail(R, wl, self.fpre)

    def out_addr(self, R, role):
        a = self.a; t = R["t"]
        RS = 18432 if role == "F" else 8192
        a("v_and_b32 v%d, 7, v0" % (t + 4))
        a("v_bfe_u32 v%d, v0, 4, 1" % (t + 3))
        a("v_mul_u32_u24 v%d, %d, v%d" % (t + 6, RS, t + 3))
        a("v_lshl_add_u32 v%d, v%d, 4, v%d" % (t + 6, t + 4, t + 6))
        a("s_mul_i32 s%d, s%d, %d" % (S_A0, S_T9, 2 * RS))
        a("s_lshl_b32 s%d, s%d, 7" % (S_T2, S_U))
        a("s_add_u32 s%d, s%d, s%d" % (S_A0, S_A0, S_T2))
        a("s_add_u32 s%d, s%d, 0x%x" % (S_A0, S_A0, WS_H4 if role == "F" else WS_H3))

    def wo_tail(self, R):
        a = self.a; t = R["t"]; X = R["X"]
        self.rho(t, t + 1)
        a("v_lshlrev_b32 v%d, 5, v%d" % (t + 1, t))
        self.out_addr(R, "WO")
        if not a.vm_done("W7") and "W7" in a.vm: a.wait_vm("W7")
        self.TS(6)
        self.barrier()
        self.TS(7)
        a("ds_read_b128 %s, v%d offset:%d" % (vr(X, 4), t + 1, L_T3))
        a("ds_read_b128 %s, v%d offset:%d" % (vr(X + 4, 4), t + 1, L_T3 + 16))
        a("s_waitcnt lgkmcnt(0)")
        self.gemv(R["acc"], R["acc2"], [R["WO"] + 4 * i for i in range(8)], [X + i for i in range(8)], R["M"], [R["B"], R["B2"], R["qB"]])
        self.merge(R["acc"], R["B"], R["B2"])
        self.tag4(R["acc"], R["T"])
        self.exec_set(0x00FF00FF, 0)
        a.vmem("buffer_store_dwordx4 %s, v%d, s[%d:%d], s%d offen sc1" % (vr(R["acc"], 4), t + 6, SRD_WS, SRD_WS + 3, S_A0), "st")
        self.TS(9)
        self.end(t)

    def f_tail(self, R, wl, wn):
        a = self.a; t = R["t"]; X = R["X"]; V = R["V"]; acc = R["acc"]; acc2 = R["acc2"]
        M = R["M"]; B = R["B"]; B2 = R["B2"]; B3 = R["qB"]
        wn = self.run_list(wl, wn, len(wl), self.ww)
        self.rho(t, t + 1)
        a("v_mul_u32_u24 v%d, 288, v%d" % (t + 1, t))
        a("s_and_b32 s%d, s%d, 1" % (S_T0, S_U))
        a("s_mul_i32 s%d, s%d, 144" % (S_T0, S_T0))
        a("s_lshl_b32 s%d, s%d, 4" % (S_T1, S_T9))
        a("s_add_u32 s%d, s%d, s%d" % (S_T0, S_T0, S_T1))
        a("v_add_u32 v%d, s%d, v%d" % (t + 1, S_T0, t + 1))
        self.out_addr(R, "F")
        a("v_lshlrev_b32 v%d, 4, v%d" % (t + 2, t))
        a("v_lshlrev_b32 v%d, 7, v%d" % (t + 5, t + 3))
        a("v_lshl_add_u32 v%d, v%d, 4, v%d" % (t + 5, t + 4, t + 5))
        a("s_lshl_b32 s%d, s%d, 9" % (S_T2, S_T9))
        a("v_add_u32 v%d, s%d, v%d" % (t + 5, S_T2, t + 5))
        for j in range(4): a("v_and_b32 v%d, 0x3f803f80, v%d" % (B + j, M + j))
        for tt in range(4):
            for m in range(2):
                tag = "W%d" % (4 * m + tt)
                if not a.vm_done(tag): a.wait_vm(tag)
                d = acc if m == 0 else acc2
                self.mfma(d, R["WO"] + 16 * m + 4 * tt, B, None if tt == 0 else d)
        self.merge(acc, B2, B3)
        self.merge(acc2, B2, B3)
        self.exec_set(0x00FF00FF, 0)
        a("ds_write_b128 v%d, %s offset:%d" % (t + 5, vr(acc, 4), L_CS))
        a("ds_write_b128 v%d, %s offset:%d" % (t + 5, vr(acc2, 4), L_CS + 256))
        self.exec_all()
        self.TS(6)
        self.barrier()
        self.barrier()
        self.TS(7)
        a("ds_read_b128 %s, v%d offset:%d" % (vr(X, 4), t + 1, L_T2))
        a("s_waitcnt lgkmcnt(0)")
        Bs = [B, B2, B3, V]
        for tt in range(4): self.bbuild(Bs[tt], X + tt, M)
        for tt in range(4):
            self.mfma(acc, R["WO"] + 4 * tt, Bs[tt], None if tt == 0 else acc)
            self.mfma(acc2, R["WO"] + 16 + 4 * tt, Bs[tt], None if tt == 0 else acc2)
        self.merge(acc, V + 4, V + 8)
        self.merge(acc2, V + 4, V + 8)
        self.exec_set(0x00FF00FF, 0)
        a("ds_write_b128 v%d, %s offset:%d" % (t + 5, vr(acc, 4), L_GP))
        a("ds_write_b128 v%d, %s offset:%d" % (t + 5, vr(acc2, 4), L_GP + 256))
        self.exec_all()
        self.barrier()
        self.barrier()
        self.TS(8)
        a("ds_read_b128 %s, v%d offset:%d" % (vr(X, 4), t + 2, L_T4))
        a.wait_vm_all()
        a("s_waitcnt lgkmcnt(0)")
        self.gemv(acc, acc2, [R["K"] + 4 * i for i in range(4)], [X + i for i in range(4)], M, [B, B2, B3])
        self.merge(acc, B, B2)
        self.tag4(acc, R["T"])
        self.exec_set(0x00FF00FF, 0)
        a.vmem("buffer_store_dwordx4 %s, v%d, s[%d:%d], s%d offen sc1" % (vr(acc, 4), t + 6, SRD_WS, SRD_WS + 3, S_A0), "st")
        self.TS(9)
        self.end(t)

    def red_tail(self, R):
        a = self.a; t = R["t"]; X = R["X"]; G = R["K"]
        Lx = self.lab()
        a("s_cmp_lt_u32 s%d, %d" % (S_U, 64 + 18))
        a("s_cbranch_scc0 %s" % Lx)
        a("s_sub_u32 s%d, s%d, 64" % (S_U, S_U))
        a("v_lshlrev_b32 v%d, 4, v0" % t)
        a("s_lshl_b32 s%d, s%d, 10" % (S_T0, S_T9))
        a("v_add_u32 v%d, s%d, v%d" % (t + 1, S_T0, t))
        L8 = self.lab()
        a("s_cmp_lt_u32 s%d, 8" % S_T9)
        a("s_cbranch_scc0 %s" % L8)
        a("s_lshl_b32 s%d, s%d, 13" % (S_T1, S_U))
        a("s_add_u32 s%d, s%d, s%d" % (S_T1, S_T1, S_T0))
        a("s_add_u32 s%d, s%d, 0x%x" % (S_T1, S_T1, WS_H3))
        a.vm = []
        L = self.poll_begin()
        a("buffer_load_dwordx4 %s, v%d, s[%d:%d], s%d offen sc1" % (vr(G, 4), t, SRD_WS, SRD_WS + 3, S_T1))
        a("s_waitcnt vmcnt(0)")
        self.check4(t + 2, G, R["T"], t + 3, True)
        self.poll_end(L, t + 2)
        a("ds_write_b128 v%d, %s offset:%d" % (t + 1, vr(G, 4), L_OP))
        a.label(L8)
        self.TS(6)
        self.barrier()
        a("s_mul_i32 s%d, s%d, 18432" % (S_T1, S_U))
        a("s_lshl_b32 s%d, s%d, 11" % (S_T0, S_T9))
        a("s_add_u32 s%d, s%d, s%d" % (S_T1, S_T1, S_T0))
        a("s_add_u32 s%d, s%d, 0x%x" % (S_T1, S_T1, WS_H4))
        self.barrier()
        L = self.poll_begin()
        a("buffer_load_dwordx4 %s, v%d, s[%d:%d], s%d offen sc1" % (vr(G, 4), t, SRD_WS, SRD_WS + 3, S_T1))
        a("buffer_load_dwordx4 %s, v%d, s[%d:%d], s%d offen offset:1024 sc1" % (vr(G + 4, 4), t, SRD_WS, SRD_WS + 3, S_T1))
        a("s_waitcnt vmcnt(0)")
        self.check4(t + 2, G, R["T"], t + 3, True)
        self.check4(t + 2, G + 4, R["T"], t + 3, False)
        self.poll_end(L, t + 2)
        for j in range(4): a("v_add_f32 v%d, v%d, v%d" % (G + j, G + j, G + 4 + j))
        a("ds_write_b128 v%d, %s offset:%d" % (t + 1, vr(G, 4), L_OP))
        self.TS(7)
        self.barrier()
        a.label(Lx)
        self.end(t)

    def aux(self):
        a = self.a
        R = self.sregs()
        t = R["t"]
        a.label("L_aux", keep=False)
        a.vm = []
        if self.chfirst: a("s_barrier")
        a("s_mov_b32 s%d, 8" % S_T9)
        a("v_lshlrev_b32 v%d, 4, v0" % t)
        for j in range(4): a("v_mov_b32 v%d, 0" % (R["B"] + j))
        self.exec_set(0xFFFFFFFF, 0)
        for base in (L_GP, L_CS):
            a("ds_write_b128 v%d, %s offset:%d" % (t, vr(R["B"], 4), base + 9 * 512))
        self.exec_all()
        self.unit_ids()
        a("s_waitcnt lgkmcnt(0)")
        self.srd(SRD_WS, P_WS, WS_SIZE)
        self.load_tag()
        if self.codepf:
            Lpf = self.lab()
            a("s_cmp_ge_u32 s2, 248")
            a("s_cbranch_scc0 %s" % Lpf)
            a("s_getpc_b64 s[%d:%d]" % (S_BASE, S_BASE + 1))
            a.label("L_pc")
            a("s_sub_u32 s%d, s%d, L_pc-%s" % (S_BASE, S_BASE, NAME))
            a("s_subb_u32 s%d, s%d, 0" % (S_BASE + 1, S_BASE + 1))
            for i in range(self.codepf):
                a("global_load_dwordx4 %s, v%d, s[%d:%d] offset:%d" % (vr(R["K"] + 4 * (i % 16), 4), t, S_BASE, S_BASE + 1, (i % 4) * 1024))
                if i % 4 == 3:
                    a("s_add_u32 s%d, s%d, 4096" % (S_BASE, S_BASE))
                    a("s_addc_u32 s%d, s%d, 0" % (S_BASE + 1, S_BASE + 1))
            a("s_waitcnt vmcnt(0)")
            a.label(Lpf)
        self.masks(R["M"], t, t + 1)
        self.base_init(R)
        a("s_cmp_lt_u32 s2, 144")
        a("s_cbranch_scc1 L_aux_F")
        a("s_cmp_lt_u32 s2, 208")
        a("s_cbranch_scc1 L_aux_WO")
        hist0 = list(a.hist)
        self.finish_tag(R["T"])
        self.barrier(); self.barrier()
        a("s_branch L_RED_tail")
        a.hist = list(hist0); a.vm = []
        a.label("L_aux_WO")
        self.waddr_WO(R)
        self.run_list(self.wo_list(R), 0, 8, 2)
        self.finish_tag(R["T"])
        self.barrier(); self.barrier()
        a("s_branch L_WO_tail")
        a.hist = list(hist0); a.vm = []
        a.label("L_aux_F")
        self.waddr_F(R)
        self.finish_tag(R["T"])
        self.barrier()
        self.run_list(self.f_list(R), 0, self.fpre, 99)
        self.barrier()
        a("s_branch L_F_tail")

    def ch_prologue(self):
        a = self.a
        a.vm = []
        T = 1; t = 2
        M = 16; B = 20; B2 = 24; B3 = 28; acc = 32; acc2 = 36
        XR = 40; XF = 48; W = 64; XD = 136
        self.vmax = max(self.vmax, 156)
        if self.prio: a("s_setprio 3")
        a("v_lshlrev_b32 v%d, 5, v0" % t)
        self.rho(t + 1, t + 2)
        a("v_lshlrev_b32 v%d, 13, v%d" % (t + 1, t + 1))
        a("v_and_b32 v%d, 7, v0" % (t + 2))
        a("v_lshl_add_u32 v%d, v%d, 4, v%d" % (t + 1, t + 2, t + 1))
        a("s_and_b32 s%d, s%d, 3" % (S_A1, S_S))
        a("s_lshr_b32 s%d, s%d, 2" % (S_A2, S_S))
        a("s_mul_i32 s%d, s%d, %d" % (S_T0, S_A1, 144 * 8192))
        a("s_lshl_b32 s%d, s%d, 9" % (S_T1, S_J))
        a("s_add_u32 s%d, s%d, s%d" % (S_T0, S_T0, S_T1))
        a("s_lshl_b32 s%d, s%d, 7" % (S_T1, S_A2))
        a("s_add_u32 s%d, s%d, s%d" % (S_A0, S_T0, S_T1))
        a("s_waitcnt lgkmcnt(0)")
        self.srd(SRD_X, P_X, 1152)
        if not self.noq:
            a("s_add_u32 s%d, s%d, s%d" % (S_BASE, P_WQ, S_A0))
            a("s_addc_u32 s%d, s%d, 0" % (S_BASE + 1, P_WQ + 1))
            a.vmem("buffer_load_dwordx4 %s, v%d, s[%d:%d], 0 offen" % (vr(XR, 4), t, SRD_X, SRD_X + 3), "x0")
            a.vmem("buffer_load_dwordx4 %s, v%d, s[%d:%d], 0 offen offset:16" % (vr(XR + 4, 4), t, SRD_X, SRD_X + 3), "x1")
            for i in range(18):
                a.vmem("global_load_dwordx4 %s, v%d, s[%d:%d] nt" % (vr(W + 4 * i, 4), t + 1, S_BASE, S_BASE + 1), "w%d" % i)
                if i < 17:
                    a("s_add_u32 s%d, s%d, 65536" % (S_BASE, S_BASE))
                    a("s_addc_u32 s%d, s%d, 0" % (S_BASE + 1, S_BASE + 1))
        if self.chfirst: a("s_barrier")
        a("s_branch L_ch_main")
        self.ch_vm = list(a.vm)

    def ch(self):
        a = self.a
        a.label("L_ch_main", keep=False)
        a.vm = list(self.ch_vm)
        T = 1; t = 2
        M = 16; B = 20; B2 = 24; B3 = 28; acc = 32; acc2 = 36
        XR = 40; XF = 48; W = 64; XD = 136
        self.unit_ids()
        self.TS(1)
        self.srd(SRD_WS, P_WS, WS_SIZE)
        self.load_tag()
        self.masks(M, t + 2, t + 3)
        if not self.noq:
            a("s_mul_i32 s%d, s%d, 9" % (S_T0, S_A1))
            a("v_subrev_u32 v%d, s%d, v0" % (t + 8, S_T0))
            a("v_cmp_gt_u32 vcc, 9, v%d" % (t + 8))
            a("s_mov_b64 s[%d:%d], vcc" % (S_STR, S_STR + 1))
            a("v_lshlrev_b32 v%d, 3, v%d" % (t + 8, t + 8))
            self.rho(t + 9, t + 3)
            a("v_mul_u32_u24 v%d, 80, v%d" % (t + 9, t + 9))
            a("v_bfe_u32 v%d, v0, 4, 1" % (t + 10))
            a("v_and_b32 v%d, 7, v0" % (t + 3))
            a("v_lshl_add_u32 v%d, v%d, 3, v%d" % (t + 10, t + 10, t + 3))
            a("v_lshlrev_b32 v%d, 4, v%d" % (t + 10, t + 10))
            a("s_lshl_b32 s%d, s%d, 12" % (S_T0, S_J))
            a("s_add_u32 s%d, s%d, 0x%x" % (S_A0, S_T0, WS_H1))
            a("s_lshl_b32 s%d, s%d, 10" % (S_T1, S_A1))
            a("s_lshl_b32 s%d, s%d, 8" % (S_T2, S_A2))
            a("s_add_u32 s%d, s%d, s%d" % (S_T1, S_T1, S_T2))
            a("s_add_u32 s%d, s%d, s%d" % (S_A1, S_T1, S_A0))
            a("v_lshlrev_b32 v%d, 4, v0" % (t + 11))
            a("v_lshrrev_b32 v%d, 3, v0" % (t + 12))
            a("v_lshlrev_b32 v%d, 5, v%d" % (t + 12, t + 12))
            a("v_add_u32 v%d, v%d, v%d" % (t + 12, t + 12, t + 3))
            a("v_lshlrev_b32 v%d, 1, v%d" % (t + 12, t + 12))
            self.finish_tag(T)
            a.wait_vm("x1")
            for i in range(8):
                a("v_lshlrev_b32 v%d, 16, v%d" % (XF + 2 * i, XR + i))
                a("v_and_b32 v%d, 0xffff0000, v%d" % (XF + 2 * i + 1, XR + i))
            self.ln_fast(list(range(XF, XF + 16)), t + 2, 36)
            a("s_mov_b64 exec, s[%d:%d]" % (S_STR, S_STR + 1))
            for e in range(8):
                y = XD + 2 * e
                a("v_cvt_pk_bf16_f32 v%d, v%d, v%d" % (y, XF + e, XF + e))
                a("v_cvt_pk_bf16_f32 v%d, v%d, v%d" % (y + 1, XF + e + 8, XF + e + 8))
                a("ds_write_b64 v%d, %s offset:%d" % (t + 8, vr(y, 2), L_T1 + e * 80))
            self.exec_all()
            a("s_waitcnt lgkmcnt(0)")
            for i in range(5):
                a("ds_read_b128 %s, v%d offset:%d" % (vr(XD + 4 * i, 4), t + 9, L_T1 + 16 * i))
            a("s_waitcnt lgkmcnt(0)")
            waits = [(lambda i=i: (None if a.vm_done("w%d" % i) else a.wait_vm("w%d" % i))) for i in range(18)]
            self.gemv(acc, acc2, [W + 4 * i for i in range(18)], [XD + i for i in range(18)], M, [B, B2, B3], waits)
            self.merge(acc, B, B2)
            self.tag4(acc, T)
            self.exec_set(0x00FF00FF, 0)
            a.vmem("buffer_store_dwordx4 %s, v%d, s[%d:%d], s%d offen sc1" % (vr(acc, 4), t + 10, SRD_WS, SRD_WS + 3, S_A1), "st")
            self.exec_all()
            self.TS(2)
            G = W; G2 = W + 16
            a.vm = []
            def issue(g):
                for k in range(4):
                    a("buffer_load_dwordx4 %s, v%d, s[%d:%d], s%d offen offset:%d sc1" % (vr(g + 4 * k, 4), t + 11, SRD_WS, SRD_WS + 3, S_A0, 1024 * k))
            Lp = self.lab("Lp"); LokA = self.lab("Lok"); LokB = self.lab("Lok"); Ldone = self.lab("Lok")
            a("s_mov_b32 s%d, 0" % S_CNT)
            if self.presleep: a("s_sleep %d" % self.presleep)
            issue(G)
            a.label(Lp)
            if self.pollsleep: a("s_sleep %d" % self.pollsleep)
            issue(G2)
            a("s_waitcnt vmcnt(4)")
            for k in range(4): self.check4(t + 3, G + 4 * k, T, t + 4, k == 0)
            a("v_and_b32 v%d, s%d, v%d" % (t + 3, S_MASK, t + 3))
            a("v_cmp_ne_u32 vcc, 0, v%d" % (t + 3))
            a("s_cbranch_vccz %s" % LokA)
            issue(G)
            a("s_waitcnt vmcnt(4)")
            for k in range(4): self.check4(t + 3, G2 + 4 * k, T, t + 4, k == 0)
            a("v_and_b32 v%d, s%d, v%d" % (t + 3, S_MASK, t + 3))
            a("v_cmp_ne_u32 vcc, 0, v%d" % (t + 3))
            a("s_cbranch_vccz %s" % LokB)
            a("s_add_u32 s%d, s%d, 1" % (S_CNT, S_CNT))
            a("s_cmp_lt_u32 s%d, %d" % (S_CNT, POLL_MAX))
            a("s_cbranch_scc1 %s" % Lp)
            a.label(LokB)
            a("s_waitcnt vmcnt(0)")
            for j in range(16): a("v_mov_b32 v%d, v%d" % (G + j, G2 + j))
            a.label(LokA)
            for j in range(4):
                a("v_add_f32 v%d, v%d, v%d" % (G + j, G + j, G + 4 + j))
                a("v_add_f32 v%d, v%d, v%d" % (G + 8 + j, G + 8 + j, G + 12 + j))
            for j in range(4): a("v_add_f32 v%d, v%d, v%d" % (G + j, G + j, G + 8 + j))
            for j in range(4): a("v_cvt_pk_bf16_f32 v%d, v%d, v%d" % (G + j, G + j, G + j))
            for j in range(4): a("ds_write_b16 v%d, v%d offset:%d" % (t + 12, G + j, L_QT + 16 * j))
        else:
            self.finish_tag(T)
        self.TS(3)
        self.barrier()
        a("s_waitcnt vmcnt(0)")
        a("s_cmp_lt_u32 s2, 144")
        a("s_cbranch_scc1 L_ch_F")
        a("s_cmp_lt_u32 s2, 208")
        a("s_cbranch_scc1 L_ch_WO")
        hist0 = list(a.hist)
        Lx = self.lab()
        XV = XD; HF = XD + 4; G8 = W
        a("s_cmp_lt_u32 s%d, %d" % (S_U, 64 + 18))
        a("s_cbranch_scc1 L_ch_R18")
        self.barrier()
        self.end(t)
        a.label("L_ch_R18")
        a("s_sub_u32 s%d, s%d, 64" % (S_U, S_U))
        a("v_and_b32 v%d, 7, v0" % (t + 2))
        a("v_lshlrev_b32 v%d, 1, v%d" % (t + 3, t + 2))
        a("s_lshl_b32 s%d, s%d, 6" % (S_A2, S_U))
        for j in range(4):
            a("buffer_load_ushort v%d, v%d, s[%d:%d], s%d offen offset:%d" % (XV + j, t + 3, SRD_X, SRD_X + 3, S_A2, 16 * j))
        a("v_lshlrev_b32 v%d, 4, v0" % (t + 4))
        a("v_lshlrev_b32 v%d, 4, v%d" % (t + 5, t + 2))
        a("s_lshl_b32 s%d, s%d, 7" % (S_A0, S_U))
        a("s_add_u32 s%d, s%d, 0x%x" % (S_A0, S_A0, WS_HH))
        a("s_waitcnt vmcnt(0)")
        for j in range(4): a("v_lshlrev_b32 v%d, 16, v%d" % (XV + j, XV + j))
        self.srd(SRD_X, P_OUT, 1152)
        self.barrier()
        self.barrier()
        self.TS(5)
        def sum_parts(n):
            for w in range(n): a("ds_read_b128 %s, v%d offset:%d" % (vr(G8 + 4 * w, 4), t + 4, L_OP + 1024 * w))
            a("s_waitcnt lgkmcnt(0)")
            pairs = [(0, 1), (2, 3), (4, 5), (6, 7), (0, 2), (4, 6), (0, 4)] + ([(0, 8)] if n == 9 else [])
            for (x, y) in pairs:
                for j in range(4): a("v_add_f32 v%d, v%d, v%d" % (G8 + 4 * x + j, G8 + 4 * x + j, G8 + 4 * y + j))
            regs = [G8, G8 + 1, G8 + 2, G8 + 3]
            self.dppstep(regs, "row_ror:8")
            self.rowsum(regs, [B, B + 1, B + 2, B + 3])
        sum_parts(8)
        for j in range(4): self.rbf16(G8 + j)
        for j in range(4): a("v_add_f32 v%d, v%d, v%d" % (HF + j, G8 + j, XV + j))
        for j in range(4): self.rbf16(HF + j)
        for j in range(4): a("v_or_b32 v%d, s%d, v%d" % (XV + j, S_TAG, HF + j))
        self.exec_set(0xFF, 0)
        a("buffer_store_dwordx4 %s, v%d, s[%d:%d], s%d offen sc1" % (vr(XV, 4), t + 5, SRD_WS, SRD_WS + 3, S_A0))
        self.exec_all()
        self.TS(6)
        self.barrier()
        self.barrier()
        self.TS(7)
        sum_parts(9)
        for j in range(4): self.rbf16(G8 + j)
        for j in range(4): a("v_add_f32 v%d, v%d, v%d" % (G8 + j, G8 + j, HF + j))
        if self.offset_out:
            for j in range(4): a("v_add_f32 v%d, 0x%x, v%d" % (G8 + j, f2u(self.offset_out), G8 + j))
        for j in range(4): a("v_cvt_pk_bf16_f32 v%d, v%d, v%d" % (G8 + j, G8 + j, G8 + j))
        self.exec_set(0xFF, 0)
        for j in range(4):
            a("buffer_store_short v%d, v%d, s[%d:%d], s%d offen offset:%d" % (G8 + j, t + 3, SRD_X, SRD_X + 3, S_A2, 16 * j))
        Le = self.lab()
        a("s_cmp_eq_u32 s%d, 0" % S_U)
        a("s_cbranch_scc0 %s" % Le)
        self.exec_set(1, 0)
        a("v_mov_b32 v%d, s%d" % (t + 2, S_TAG))
        a("v_mov_b32 v%d, 0" % (t + 6))
        a("buffer_store_dword v%d, v%d, s[%d:%d], 0 offen offset:%d" % (t + 2, t + 6, SRD_WS, SRD_WS + 3, WS_EPOCH))
        a.label(Le)
        self.TS(8)
        self.end(t + 6)
        a.hist = list(hist0)
        a.label("L_ch_WO")
        a("v_lshrrev_b32 v%d, 4, v0" % (t + 3))
        a("v_mul_u32_u24 v%d, 384, v%d" % (t + 3, t + 3))
        a("v_and_b32 v%d, 15, v0" % (t + 2))
        a("v_lshl_add_u32 v%d, v%d, 4, v%d" % (t + 2, t + 2, t + 3))
        a("s_mul_i32 s%d, s%d, 6144" % (S_T0, S_U))
        a("s_add_u32 s%d, s%d, 0x%x" % (S_T0, S_T0, WS_H2))
        a("s_add_u32 s%d, s%d, 3072" % (S_T1, S_T0))
        a("v_and_b32 v%d, 7, v0" % (t + 8))
        a("v_lshlrev_b32 v%d, 5, v%d" % (t + 8, t + 8))
        a("v_bfe_u32 v%d, v0, 3, 1" % (t + 9))
        a("v_lshl_add_u32 v%d, v%d, 4, v%d" % (t + 8, t + 9, t + 8))
        self.barrier()
        self.TS(4)
        O = W; ML = W + 16
        L = self.poll_begin()
        for q in range(4):
            a("buffer_load_dwordx4 %s, v%d, s[%d:%d], s%d offen offset:%d sc1" % (vr(O + 4 * q, 4), t + 2, SRD_WS, SRD_WS + 3, S_T0 if q < 2 else S_T1, 1536 * (q % 2)))
        for q in range(4):
            a("buffer_load_dwordx2 %s, v%d, s[%d:%d], s%d offen offset:%d sc1" % (vr(ML + 2 * q, 2), t + 3, SRD_WS, SRD_WS + 3, S_T0 if q < 2 else S_T1, 1536 * (q % 2) + 256))
        a("s_waitcnt vmcnt(0)")
        for k in range(6): self.check4(t + 4, O + 4 * k, T, t + 5, k == 0)
        self.poll_end(L, t + 4)
        self.TS(6)
        mg = t + 4
        Mq = [ML + 2 * q for q in range(4)]
        for q in range(4): a("v_and_b32 v%d, 0xfffff000, v%d" % (Mq[q], Mq[q]))
        a("v_max3_f32 v%d, v%d, v%d, v%d" % (mg, Mq[0], Mq[1], Mq[2]))
        a("v_max_f32 v%d, v%d, v%d" % (mg, mg, Mq[3]))
        self.rowsum([mg], [t + 5], "v_max_f32")
        for q in range(4): a("v_sub_f32 v%d, v%d, v%d" % (Mq[q], Mq[q], mg))
        for q in range(4): a("v_exp_f32 v%d, v%d" % (Mq[q], Mq[q]))
        Ls = t + 6
        a("v_mul_f32 v%d, v%d, v%d" % (Ls, Mq[0], Mq[0] + 1))
        for j in range(4): a("v_mul_f32 v%d, v%d, v%d" % (acc + j, O + j, Mq[0]))
        for q in range(1, 4):
            a("v_fmac_f32 v%d, v%d, v%d" % (Ls, Mq[q], Mq[q] + 1))
            for j in range(4): a("v_fmac_f32 v%d, v%d, v%d" % (acc + j, O + 4 * q + j, Mq[q]))
        self.rowsum([Ls, acc, acc + 1, acc + 2, acc + 3], [t + 7, B, B + 1, B + 2, B + 3])
        a("v_rcp_f32 v%d, v%d" % (Ls, Ls))
        for j in range(4): a("v_mul_f32 v%d, v%d, v%d" % (acc + j, acc + j, Ls))
        for j in range(4): a("v_cvt_pk_bf16_f32 v%d, v%d, v%d" % (acc + j, acc + j, acc + j))
        self.exec_set(0xFFFF, 0)
        a("ds_write_b128 v%d, %s offset:%d" % (t + 8, vr(acc, 4), L_T3))
        self.exec_all()
        self.TS(7)
        self.barrier()
        self.end(t)
        a.hist = list(hist0)
        a.label("L_ch_F")
        H = W
        a("v_lshlrev_b32 v%d, 4, v0" % (t + 2))
        a("s_mov_b32 s%d, 0x%x" % (S_T0, WS_HH))
        for j in range(4): a("v_mov_b32 v%d, 0" % (H + 8 + j))
        a("v_and_b32 v%d, 7, v0" % (t + 8))
        a("v_mul_u32_u24 v%d, 288, v%d" % (t + 8, t + 8))
        a("v_lshrrev_b32 v%d, 3, v0" % (t + 9))
        a("v_lshl_add_u32 v%d, v%d, 4, v%d" % (t + 8, t + 9, t + 8))
        a("s_mov_b32 s%d, 0x03020302" % S_T1)
        a("v_lshrrev_b32 v%d, 5, v0" % (t + 10))
        a("v_mul_u32_u24 v%d, 2560, v%d" % (t + 10, t + 10))
        a("v_and_b32 v%d, 31, v0" % (t + 9))
        a("v_lshl_add_u32 v%d, v%d, 4, v%d" % (t + 10, t + 9, t + 10))
        a("v_and_b32 v%d, 7, v0" % (t + 12))
        a("v_lshlrev_b32 v%d, 4, v%d" % (t + 12, t + 12))
        a("v_bfe_u32 v%d, v0, 4, 1" % (t + 11))
        a("v_lshl_add_u32 v%d, v%d, 7, v%d" % (t + 11, t + 11, t + 12))
        a("s_lshl_b32 s%d, s%d, 8" % (S_A0, S_U))
        a("s_xor_b32 s%d, s%d, 256" % (S_A2, S_A0))
        a("s_add_u32 s%d, s%d, 0x%x" % (S_A0, S_A0, WS_HX))
        a("s_add_u32 s%d, s%d, 0x%x" % (S_A2, S_A2, WS_HX))
        a("s_mov_b32 s%d, 0xFF00FF00" % S_A1)
        a("s_mov_b32 s%d, 0x000000FF" % S_KV)
        a("s_bitcmp1_b32 s%d, 0" % S_U)
        a("s_cselect_b32 s%d, 0x00FF00FF, s%d" % (S_A1, S_A1))
        a("s_cselect_b32 s%d, 0x0000FF00, s%d" % (S_KV, S_KV))
        self.barrier()
        a("s_barrier")
        self.barrier()
        CSv = W + 56
        G = W + 32
        for k in range(5): a("ds_read_b128 %s, v%d offset:%d" % (vr(G + 4 * k, 4), t + 10, L_CS + 512 * k))
        a("s_waitcnt lgkmcnt(0)")
        for (x, y) in ((0, 1), (2, 3), (0, 2), (0, 4)):
            for j in range(4): a("v_add_f32 v%d, v%d, v%d" % (G + 4 * x + j, G + 4 * x + j, G + 4 * y + j))
        for j in range(4): a("v_mov_b32 v%d, v%d" % (CSv + j, G + j))
        self.TS(4)
        L = self.poll_begin()
        a("buffer_load_dwordx4 %s, v%d, s[%d:%d], s%d offen sc1" % (vr(H, 4), t + 2, SRD_WS, SRD_WS + 3, S_T0))
        a("buffer_load_dwordx4 %s, v%d, s[%d:%d], s%d offen offset:1024 sc1" % (vr(H + 4, 4), t + 2, SRD_WS, SRD_WS + 3, S_T0))
        self.exec_set(0xFFFF, 0)
        a("buffer_load_dwordx4 %s, v%d, s[%d:%d], s%d offen offset:2048 sc1" % (vr(H + 8, 4), t + 2, SRD_WS, SRD_WS + 3, S_T0))
        self.exec_all()
        a("s_waitcnt vmcnt(0)")
        self.check4(t + 3, H, T, t + 4, True)
        self.check4(t + 3, H + 4, T, t + 4, False)
        self.exec_set(0xFFFF, 0)
        self.check4(t + 3, H + 8, T, t + 4, False)
        self.exec_all()
        self.poll_end(L, t + 3)
        self.TS(6)
        D = W + 12
        for j in range(12): a("v_perm_b32 v%d, v%d, v%d, s%d" % (D + j, H + j, H + j, S_T1))
        a("ds_write_b128 v%d, %s offset:%d" % (t + 8, vr(D, 4), L_T2))
        a("ds_write_b128 v%d, %s offset:%d" % (t + 8, vr(D + 4, 4), L_T2 + 128))
        self.exec_set(0xFFFF, 0)
        a("ds_write_b128 v%d, %s offset:%d" % (t + 8, vr(D + 8, 4), L_T2 + 256))
        self.exec_all()
        self.TS(7)
        self.barrier()
        a("s_setprio 0")
        for j in range(12): a("v_and_b32 v%d, 0xffff0000, v%d" % (H + j, H + j))
        self.stats1(list(range(H, H + 12)), t + 3)
        a("v_add_f32 v%d, 0x%x, v%d" % (t + 4, f2u(1e-5), t + 4))
        a("v_rcp_f32 v%d, v%d" % (t + 4, t + 4))
        a("s_setprio 3")
        self.barrier()
        G = W + 32;
        for k in range(5): a("ds_read_b128 %s, v%d offset:%d" % (vr(G + 4 * k, 4), t + 10, L_GP + 512 * k))
        a("s_waitcnt lgkmcnt(0)")
        for (x, y) in ((0, 1), (2, 3), (0, 2), (0, 4)):
            for j in range(4): a("v_add_f32 v%d, v%d, v%d" % (G + 4 * x + j, G + 4 * x + j, G + 4 * y + j))
        for j in range(4): a("v_fma_f32 v%d, -v%d, v%d, v%d" % (G + j, t + 3, CSv + j, G + j))
        for j in range(4): a("v_mov_b32 v%d, v%d" % (G + 4 + j, G + j))
        for j in range(4): a("v_permlane32_swap_b32 v%d, v%d" % (G + 4 + j, G + j))
        for j in range(4): a("v_add_f32 v%d, v%d, v%d" % (G + j, G + j, G + 4 + j))
        for j in range(4): a("v_bfi_b32 v%d, s%d, v%d, v%d" % (G + 4 + j, S_MASK, T, G + j))
        a("s_mov_b32 exec_lo, s%d" % S_A1)
        a("s_mov_b32 exec_hi, 0")
        a("buffer_store_dwordx4 %s, v%d, s[%d:%d], s%d offen sc1" % (vr(G + 4, 4), t + 11, SRD_WS, SRD_WS + 3, S_A2))
        self.exec_all()
        self.TS(8)
        P = G + 8
        L = self.poll_begin()
        a("buffer_load_dwordx4 %s, v%d, s[%d:%d], s%d offen sc1" % (vr(P, 4), t + 11, SRD_WS, SRD_WS + 3, S_A0))
        a("s_waitcnt vmcnt(0)")
        self.check4(t + 5, P, T, t + 6, True)
        self.poll_end(L, t + 5)
        self.TS(9)
        for j in range(4): a("v_add_f32 v%d, v%d, v%d" % (G + j, G + j, P + j))
        for j in range(4): a("v_mov_b32 v%d, v%d" % (G + 4 + j, G + j))
        for j in range(4): a("v_permlane16_swap_b32 v%d, v%d" % (G + 4 + j, G + j))
        for j in range(4): a("v_mul_f32 v%d, v%d, v%d" % (G + j, G + j, G + 4 + j))
        for j in range(4): a("v_mul_f32 v%d, v%d, v%d" % (G + j, G + j, t + 4))
        for j in range(4): a("v_cvt_pk_bf16_f32 v%d, v%d, v%d" % (G + j, G + j, G + j))
        a("s_mov_b32 exec_lo, s%d" % S_KV)
        a("s_mov_b32 exec_hi, 0")
        a("ds_write_b128 v%d, %s offset:%d" % (t + 12, vr(G, 4), L_T4))
        self.exec_all()
        self.barrier()
        self.end(t)

    def stats(self, regs, t, valid_lanes=None, third_masked=False):
        a = self.a
        s1 = t; s2 = t + 1; x = t + 2
        n = len(regs)
        a("v_add_f32 v%d, v%d, v%d" % (s1, regs[0], regs[1]))
        a("v_add_f32 v%d, v%d, v%d" % (s2, regs[2], regs[3]))
        for i in range(4, n, 2):
            a("v_add_f32 v%d, v%d, v%d" % (s1, s1, regs[i]))
            a("v_add_f32 v%d, v%d, v%d" % (s2, s2, regs[i + 1]))
        a("v_add_f32 v%d, v%d, v%d" % (s1, s1, s2))
        self.allsum([s1], [x])
        a("s_mov_b32 s%d, 0x%x" % (S_T3, f2u(1.0 / 576)))
        a("v_mul_f32 v%d, s%d, v%d" % (s1, S_T3, s1))
        a("v_cmp_gt_u32 vcc, %d, v0" % (valid_lanes if valid_lanes is not None else 16))
        a("v_cndmask_b32 v%d, 0, v%d, vcc" % (t + 3, s1))
        mv = [t + 3] * n if valid_lanes is not None else [s1] * 8 + [t + 3] * 4
        a("v_sub_f32 v%d, v%d, v%d" % (x, regs[0], mv[0]))
        a("v_mul_f32 v%d, v%d, v%d" % (s2, x, x))
        for i in range(1, n):
            xx = x if i % 2 == 0 else t + 4
            a("v_sub_f32 v%d, v%d, v%d" % (xx, regs[i], mv[i]))
            a("v_fmac_f32 v%d, v%d, v%d" % (s2, xx, xx))
        self.allsum([s2], [x])
        a("v_mul_f32 v%d, s%d, v%d" % (s2, S_T3, s2))

    def stats1(self, regs, t):
        a = self.a
        n = len(regs)
        s1 = t; s2 = t + 1
        a("v_readfirstlane_b32 s%d, v%d" % (S_T3, regs[0]))
        a("v_cmp_gt_u32 vcc, 16, v0")
        a("v_mov_b32 v%d, s%d" % (t + 2, S_T3))
        a("v_cndmask_b32 v%d, 0, v%d, vcc" % (t + 2, t + 2))
        for r in regs[:8]: a("v_subrev_f32 v%d, s%d, v%d" % (r, S_T3, r))
        for r in regs[8:]: a("v_sub_f32 v%d, v%d, v%d" % (r, r, t + 2))
        a("v_add_f32 v%d, v%d, v%d" % (s1, regs[0], regs[1]))
        a("v_mul_f32 v%d, v%d, v%d" % (s2, regs[0], regs[0]))
        a("v_add_f32 v%d, v%d, v%d" % (t + 3, regs[2], regs[3]))
        a("v_mul_f32 v%d, v%d, v%d" % (t + 4, regs[2], regs[2]))
        a("v_fmac_f32 v%d, v%d, v%d" % (s2, regs[1], regs[1]))
        a("v_fmac_f32 v%d, v%d, v%d" % (t + 4, regs[3], regs[3]))
        for i in range(4, n, 2):
            a("v_add_f32 v%d, v%d, v%d" % (s1, s1, regs[i]))
            a("v_fmac_f32 v%d, v%d, v%d" % (s2, regs[i], regs[i]))
            a("v_add_f32 v%d, v%d, v%d" % (t + 3, t + 3, regs[i + 1]))
            a("v_fmac_f32 v%d, v%d, v%d" % (t + 4, regs[i + 1], regs[i + 1]))
        a("v_add_f32 v%d, v%d, v%d" % (s1, s1, t + 3))
        a("v_add_f32 v%d, v%d, v%d" % (s2, s2, t + 4))
        self.allsum([s1, s2], [t + 3, t + 4])
        a("s_mov_b32 s%d, 0x%x" % (S_T2, f2u(1.0 / 576)))
        a("v_mul_f32 v%d, s%d, v%d" % (s1, S_T2, s1))
        a("v_mul_f32 v%d, s%d, v%d" % (s2, S_T2, s2))
        a("v_fma_f32 v%d, -v%d, v%d, v%d" % (s2, s1, s1, s2))
        a("v_max_f32 v%d, 0, v%d" % (s2, s2))
        a("v_add_f32 v%d, s%d, v%d" % (s1, S_T3, s1))

    def ln_fast(self, regs, t, valid_lanes):
        a = self.a
        n = len(regs)
        s1 = t; s2 = t + 1
        a("v_readfirstlane_b32 s%d, v%d" % (S_T3, regs[0]))
        a("v_cmp_gt_u32 vcc, %d, v0" % valid_lanes)
        a("v_mov_b32 v%d, s%d" % (t + 2, S_T3))
        a("v_cndmask_b32 v%d, 0, v%d, vcc" % (t + 2, t + 2))
        for r in regs: a("v_sub_f32 v%d, v%d, v%d" % (r, r, t + 2))
        a("v_add_f32 v%d, v%d, v%d" % (s1, regs[0], regs[1]))
        a("v_mul_f32 v%d, v%d, v%d" % (s2, regs[0], regs[0]))
        a("v_fmac_f32 v%d, v%d, v%d" % (s2, regs[1], regs[1]))
        a("v_add_f32 v%d, v%d, v%d" % (t + 3, regs[2], regs[3]))
        a("v_mul_f32 v%d, v%d, v%d" % (t + 4, regs[2], regs[2]))
        a("v_fmac_f32 v%d, v%d, v%d" % (t + 4, regs[3], regs[3]))
        for i in range(4, n, 2):
            a("v_add_f32 v%d, v%d, v%d" % (s1, s1, regs[i]))
            a("v_fmac_f32 v%d, v%d, v%d" % (s2, regs[i], regs[i]))
            a("v_add_f32 v%d, v%d, v%d" % (t + 3, t + 3, regs[i + 1]))
            a("v_fmac_f32 v%d, v%d, v%d" % (t + 4, regs[i + 1], regs[i + 1]))
        a("v_add_f32 v%d, v%d, v%d" % (s1, s1, t + 3))
        a("v_add_f32 v%d, v%d, v%d" % (s2, s2, t + 4))
        self.allsum([s1, s2], [t + 3, t + 4])
        a("s_mov_b32 s%d, 0x%x" % (S_T3, f2u(1.0 / 576)))
        a("v_mul_f32 v%d, s%d, v%d" % (s1, S_T3, s1))
        a("v_mul_f32 v%d, s%d, v%d" % (s2, S_T3, s2))
        a("v_fma_f32 v%d, -v%d, v%d, v%d" % (s2, s1, s1, s2))
        a("v_max_f32 v%d, 0, v%d" % (s2, s2))
        a("v_add_f32 v%d, 0x%x, v%d" % (s2, f2u(1e-5), s2))
        a("v_rsq_f32 v%d, v%d" % (s2, s2))
        a("v_mul_f32 v%d, v%d, v%d" % (s1, s1, s2))
        for r in regs: a("v_fma_f32 v%d, v%d, v%d, -v%d" % (r, r, s2, s1))

if __name__ == "__main__":
    import argparse
    p = argparse.ArgumentParser()
    p.add_argument("-o", default="sequential_preLN__sliding_block_cached__glu_gated_bilinear__decode.s")
    p.add_argument("--ts", action="store_true")
    p.add_argument("--wk", type=int, default=4)
    p.add_argument("--wkwo", type=int, default=5)
    p.add_argument("--ww", type=int, default=3)
    p.add_argument("--fpre", type=int, default=1)
    p.add_argument("--noq", action="store_true")
    p.add_argument("--noprio", action="store_true")
    p.add_argument("--offset", type=float, default=0.0)
    p.add_argument("--knat", action="store_true")
    p.add_argument("--wlate", action="store_true")
    p.add_argument("--pollsleep", type=int, default=0)
    p.add_argument("--presleep", type=int, default=20)
    p.add_argument("--nochfirst", action="store_true")
    p.add_argument("--wearly", action="store_true")
    p.add_argument("--wopre", type=int, default=0)
    p.add_argument("--womid", type=int, default=4)
    p.add_argument("--codepf", type=int, default=0)
    args = p.parse_args()
    g = Gen(ts=args.ts, wk=args.wk, wkwo=args.wkwo, ww=args.ww, fpre=args.fpre, noq=args.noq, prio=not args.noprio, offset_out=args.offset, knat=args.knat, wlate=not args.wearly, pollsleep=args.pollsleep, chfirst=not args.nochfirst, presleep=args.presleep, wopre=args.wopre, womid=args.womid, codepf=args.codepf)
    txt = g.build()
    hdr = open("sequential_preLN__sliding_block_cached__glu_gated_bilinear__decode.s.ref").read().split("; Override launch")[0]
    open(args.o, "w").write(hdr + txt)
    print("wrote", args.o, "auto nops:", g.a.nops, "vmax", g.vmax)
```

```python
import sys
sys.path.insert(0, "gen")
from asmlib import *
import struct
def f2u(x): return struct.unpack("<I", struct.pack("<f", x))[0]

NAME = "sequential_preLN__sliding_block_cached__glu_gated_bilinear__decode_kernel"

WS_EPOCH = 0
WS_H1   = 0x1000
WS_H2   = 0x20000
WS_H3   = 0x80000
WS_HH   = 0xA8000
WS_H4   = 0xB0000
WS_HX   = 0x110000
WS_TS   = 0x180000
WS_SIZE = 0x200000

L_QT = 0x000
L_MX = 0x200
L_LS = 0x280
L_ST = 0x300
L_FL = 0x320
L_OP = 0x400
L_T1 = 0x2800
L_T2 = 0x2C00
L_T3 = 0x3600
L_T4 = 0x3700
L_GP = 0x3800
L_CS = 0x4C00
LDS_BYTES = 0x6000

TAGMASK = 0xFFF
C1 = 0.08838834764831845 * 1.4426950408889634
NWAVES = 10
POLL_MAX = 200000

S_WAVE = 3; S_X = 4; S_G = 5; S_J = 6; S_S = 7
P_X = 8; P_K = 10; P_V = 12; P_WQ = 14; P_WO = 16; P_BX = 18; P_WG = 20; P_WU = 22
P_WD = 24; P_OUT = 26; P_DBG = 28; P_WS = 30
SRD_K = 32; SRD_V = 36; SRD_WS = 40; SRD_X = 44
S_TAG = 48; S_MASK = 49; S_T0 = 50; S_T1 = 51; S_T2 = 52; S_T3 = 53; S_CNT = 54; S_KV = 55; S_KV2 = 56
S_C1 = 57
S_BASE = 58; S_STR = 60; S_U = 62; S_T9 = 63; S_BASE2 = 64; S_EP = 66
S_A0 = 67; S_A1 = 68; S_A2 = 69; S_KV3 = 96

TSB = 70

class Gen:
    def __init__(self, ts=False, wk=3, wkwo=5, ww=3, fpre=1, noq=False, prio=True, offset_out=0.0, knat=False, wlate=False, pollsleep=0, pipe=True, chfirst=True, presleep=0, wopre=4, womid=8, codepf=0, wv=4, vstart=8, wo1=5, npoll=2, auxw=2, dlate=True):
        self.a = Asm(); self.ts = ts; self.knat = knat; self.wlate = wlate; self.pollsleep = pollsleep; self.pipe = pipe; self.chfirst = chfirst; self.presleep = presleep; self.wopre = wopre; self.womid = womid; self.codepf = codepf; self.wv = wv; self.vstart = vstart; self.wo1 = wo1; self.npoll = npoll; self.auxw = auxw; self.dlate = dlate
        self.wk = wk; self.wkwo = wkwo; self.ww = ww; self.fpre = fpre; self.noq = noq; self.prio = prio
        self.offset_out = offset_out
        self.nlab = 0; self.vmax = 0
    def lab(self, p="L"):
        self.nlab += 1
        return "%s%d" % (p, self.nlab)
    def TS(self, i):
        if self.ts:
            self.a("s_memtime s[%d:%d]" % (TSB + 2 * i, TSB + 2 * i + 1))
            if i == 0: self.a("s_memrealtime s[90:91]")
    def ts_init(self):
        if self.ts:
            for i in range(10): self.a("s_mov_b64 s[%d:%d], 0" % (TSB + 2 * i, TSB + 2 * i + 1))
    def ts_flush(self, vt):
        if not self.ts: return
        a = self.a
        a("s_memtime s[92:93]\ns_memrealtime s[94:95]\ns_waitcnt lgkmcnt(0)")
        a("s_mul_i32 s%d, s2, 12" % S_T0)
        a("s_add_u32 s%d, s%d, s%d" % (S_T0, S_T0, S_WAVE))
        a("s_lshl_b32 s%d, s%d, 6" % (S_T0, S_T0))
        a("s_add_u32 s%d, s%d, %d" % (S_T0, S_T0, WS_TS))
        a("s_mov_b32 exec_lo, 1\ns_mov_b32 exec_hi, 0")
        a("v_mov_b32 v%d, 0" % vt)
        regs = [TSB + 2 * i for i in range(10)] + [90, 92, 94]
        for i, r in enumerate(regs):
            a("v_mov_b32 v%d, s%d" % (vt + 1, r))
            a("buffer_store_dword v%d, v%d, s[%d:%d], s%d offen offset:%d" % (vt + 1, vt, SRD_WS, SRD_WS + 3, S_T0, 4 * i))
            a("s_nop 0")
    def end(self, vt=4):
        self.ts_flush(vt)
        self.a("s_endpgm")

    def srd(self, d, p, nrec):
        a = self.a
        a("s_mov_b32 s%d, s%d" % (d, p))
        a("s_and_b32 s%d, s%d, 0xffff" % (d + 1, p + 1))
        a("s_mov_b32 s%d, 0x%x" % (d + 2, nrec))
        a("s_mov_b32 s%d, 0x20000" % (d + 3))
    def load_tag(self):
        self.a("s_load_dword s%d, s[%d:%d], 0x%x" % (S_EP, P_WS, P_WS + 1, WS_EPOCH))
    def finish_tag(self, vT):
        a = self.a
        a("s_waitcnt lgkmcnt(0)")
        a("s_add_u32 s%d, s%d, 1" % (S_TAG, S_EP))
        a("s_and_b32 s%d, s%d, 0x%x" % (S_TAG, S_TAG, TAGMASK))
        a("s_movk_i32 s%d, 0x%x" % (S_MASK, TAGMASK))
        a("v_mov_b32 v%d, s%d" % (vT, S_TAG))
    def masks(self, M, t0, t1):
        a = self.a
        a("v_and_b32 v%d, 1, v0" % t0)
        a("v_lshlrev_b32 v%d, 4, v%d" % (t0, t0))
        a("v_mov_b32 v%d, 0xffff" % t1)
        a("v_lshlrev_b32 v%d, v%d, v%d" % (t0, t0, t1))
        a("v_bfe_u32 v%d, v0, 1, 2" % t1)
        for j in range(4):
            a("v_cmp_eq_u32 vcc, %d, v%d" % (j, t1))
            a("v_cndmask_b32 v%d, 0, v%d, vcc" % (M + j, t0))
    def rho(self, dst, t0):
        a = self.a
        a("v_lshrrev_b32 v%d, 4, v0" % t0)
        a("v_bfe_u32 v%d, v0, 3, 1" % dst)
        a("v_lshl_add_u32 v%d, v%d, 1, v%d" % (dst, t0, dst))
    def bbuild(self, B, x, M):
        for j in range(4): self.a("v_and_b32 v%d, v%d, v%d" % (B + j, x, M + j))
    def mfma(self, D, A, B, C):
        c = "0" if C is None else vr(C, 4)
        self.a("v_mfma_f32_16x16x32_bf16 %s, %s, %s, %s" % (vr(D, 4), vr(A, 4), vr(B, 4), c))
    def gemv(self, acc, acc2, Aregs, Xregs, M, Bs, waits=None, final=True):
        a = self.a; n = len(Aregs)
        self.bbuild(Bs[0], Xregs[0], M)
        if n > 1: self.bbuild(Bs[1], Xregs[1], M)
        for t in range(n):
            if t + 2 < n: self.bbuild(Bs[(t + 2) % 3], Xregs[t + 2], M)
            if waits and waits[t]: waits[t]()
            d = acc if t % 2 == 0 else acc2
            self.mfma(d, Aregs[t], Bs[t % 3], None if t < 2 else d)
        if n > 1 and final:
            for j in range(4): a("v_add_f32 v%d, v%d, v%d" % (acc + j, acc + j, acc2 + j))
    def merge(self, D, Y, Z=None):
        a = self.a
        for j in range(4): a("v_permlane32_swap_b32 v%d, v%d" % (D + j, Y + j))
        for j in range(4): a("v_add_f32_dpp v%d, v%d, v%d row_ror:8 row_mask:0xf bank_mask:0xf" % (D + j, Y + j, D + j))
    def rowred(self, regs, t, op="v_add_f32"):
        a = self.a
        for sw in ("v_permlane32_swap_b32", "v_permlane16_swap_b32"):
            for r, x in zip(regs, t): a("%s v%d, v%d" % (sw, r, x))
            for r, x in zip(regs, t): a("%s v%d, v%d, v%d" % (op, r, r, x))
    def tag4(self, D, vT, n=4):
        for j in range(n): self.a("v_bfi_b32 v%d, s%d, v%d, v%d" % (D + j, S_MASK, vT, D + j))
    def check4(self, bad, D, vT, tmp, first):
        a = self.a
        if first:
            a("v_bitop3_b32 v%d, v%d, v%d, v%d bitop3:0x7e" % (bad, D, D + 1, vT))
            a("v_bitop3_b32 v%d, v%d, v%d, v%d bitop3:0x7e" % (tmp, D + 2, D + 3, vT))
            a("v_or_b32 v%d, v%d, v%d" % (bad, bad, tmp))
        else:
            a("v_bitop3_b32 v%d, v%d, v%d, v%d bitop3:0x7e" % (tmp, D, D + 1, vT))
            a("v_bitop3_b32 v%d, v%d, v%d, v%d bitop3:0x7e" % (tmp + 1, D + 2, D + 3, vT))
            a("v_or3_b32 v%d, v%d, v%d, v%d" % (bad, bad, tmp, tmp + 1))
    def poll_begin(self):
        L = self.lab("Lp")
        self.a("s_mov_b32 s%d, 0" % S_CNT)
        self.a.label(L)
        return L
    def poll_end(self, L, bad):
        a = self.a
        Lok = self.lab("Lok")
        a("v_and_b32 v%d, s%d, v%d" % (bad, S_MASK, bad))
        a("v_cmp_ne_u32 vcc, 0, v%d" % bad)
        a("s_cbranch_vccz %s" % Lok)
        a("s_add_u32 s%d, s%d, 1" % (S_CNT, S_CNT))
        a("s_cmp_lt_u32 s%d, %d" % (S_CNT, POLL_MAX))
        a("s_cbranch_scc1 %s" % L)
        a.label(Lok)
    def dppstep(self, regs, mod, op="v_add_f32"):
        for r in regs: self.a("%s_dpp v%d, v%d, v%d %s row_mask:0xf bank_mask:0xf" % (op, r, r, r, mod))
    def allsum(self, regs, t, op="v_add_f32"):
        for mod in ("quad_perm:[1,0,3,2]", "quad_perm:[2,3,0,1]", "row_half_mirror", "row_mirror"):
            self.dppstep(regs, mod, op)
        self.rowsum(regs, t, op)
    def rowsum(self, regs, t, op="v_add_f32"):
        a = self.a
        for sw in ("v_permlane16_swap_b32", "v_permlane32_swap_b32"):
            for r, x in zip(regs, t): a("v_mov_b32 v%d, v%d" % (x, r))
            for r, x in zip(regs, t): a("%s v%d, v%d" % (sw, x, r))
            for r, x in zip(regs, t): a("%s v%d, v%d, v%d" % (op, r, r, x))
    def rbf16(self, r):
        self.a("v_cvt_pk_bf16_f32 v%d, v%d, v%d" % (r, r, r))
        self.a("v_and_b32 v%d, 0xffff0000, v%d" % (r, r))
    def exec_set(self, lo, hi):
        self.a("s_mov_b32 exec_lo, 0x%x" % lo)
        self.a("s_mov_b32 exec_hi, 0x%x" % hi)
    def exec_all(self): self.a("s_mov_b64 exec, -1")
    def lds_wait(self, off, val, vz, vt):
        a = self.a
        L = self.lab("Lw")
        a.label(L)
        a("ds_read_b32 v%d, v%d offset:%d" % (vt, vz, L_FL + off))
        a("s_waitcnt lgkmcnt(0)")
        a("v_readfirstlane_b32 s%d, v%d" % (S_CNT, vt))
        a("s_cmp_lg_u32 s%d, %d" % (S_CNT, val))
        a("s_cbranch_scc1 %s" % L)
    def barrier(self):
        self.a("s_waitcnt lgkmcnt(0)")
        self.a("s_barrier")

    def build(self):
        a = self.a
        a.raw("; @launch grid=(256,1,1) block=(%d,1,1) lds=%d" % (NWAVES * 64, LDS_BYTES))
        a.raw('.amdgcn_target "amdgcn-amd-amdhsa--gfx950"')
        a.raw(".text\n.globl %s\n.p2align 8\n.type %s,@function\n%s:" % (NAME, NAME, NAME))
        a("s_cmp_ge_u32 s2, 256")
        a("s_cbranch_scc1 L_end")
        a("s_load_dwordx16 s[8:23], s[0:1], 0")
        a("s_load_dwordx8 s[24:31], s[0:1], 64")
        self.ts_init()
        self.TS(0)
        a("v_lshrrev_b32 v1, 6, v0")
        a("v_and_b32 v0, 63, v0")
        a("v_readfirstlane_b32 s%d, v1" % S_WAVE)
        a("s_and_b32 s%d, s2, 7" % S_X)
        a("s_lshr_b32 s%d, s2, 3" % S_G)
        a("s_and_b32 s%d, s%d, 1" % (S_S, S_G))
        a("s_lshl_b32 s%d, s%d, 1" % (S_J, S_X))
        a("s_or_b32 s%d, s%d, s%d" % (S_S, S_S, S_J))
        a("s_lshr_b32 s%d, s%d, 1" % (S_T0, S_G))
        a("s_add_u32 s%d, s%d, s%d" % (S_J, S_J, S_T0))
        a("s_and_b32 s%d, s%d, 15" % (S_J, S_J))
        a("s_cmp_eq_u32 s%d, 9" % S_WAVE)
        a("s_cbranch_scc1 L_ch")
        a("s_cmp_eq_u32 s%d, 8" % S_WAVE)
        a("s_cbranch_scc1 L_auxpf")
        self.att1()
        self.aux_pf()
        a.label("L_ch", keep=False)
        self.ch_prologue()
        self.ch_q()
        self.att2()
        a.label("L_end")
        a("s_endpgm")
        self.aux()
        self.ch_roles()
        a.label("L_codeend")
        a.raw(".fill 256, 4, 0xBF800000")
        nv = 168
        assert self.vmax <= nv
        a.raw(""".section .rodata,"a"
.p2align 6
.amdhsa_kernel %s
  .amdhsa_next_free_vgpr %d
  .amdhsa_next_free_sgpr 100
  .amdhsa_accum_offset %d
  .amdhsa_group_segment_fixed_size 0
  .amdhsa_kernarg_size 96
  .amdhsa_user_sgpr_count 2
  .amdhsa_user_sgpr_kernarg_segment_ptr 1
  .amdhsa_system_sgpr_workgroup_id_x 1
.end_amdhsa_kernel""" % (NAME, nv, nv))
        return a.text()

    def unit_ids(self):
        a = self.a
        L1 = self.lab(); L2 = self.lab()
        a("s_cmp_lt_u32 s2, 144")
        a("s_cbranch_scc0 %s" % L1)
        a("s_lshr_b32 s%d, s%d, 1" % (S_T0, S_G))
        a("s_mul_i32 s%d, s%d, 9" % (S_T1, S_X))
        a("s_add_u32 s%d, s%d, s%d" % (S_T0, S_T0, S_T1))
        a("s_lshl_b32 s%d, s%d, 1" % (S_T0, S_T0))
        a("s_and_b32 s%d, s%d, 1" % (S_T1, S_G))
        a("s_add_u32 s%d, s%d, s%d" % (S_U, S_T0, S_T1))
        a("s_branch %s" % L2)
        a.label(L1)
        a("s_sub_u32 s%d, s2, 144" % S_U)
        a.label(L2)

    def sregs(self):
        R = dict(T=1, koff=2, voff=3, t=4, M=12, qB=16, B=20, B2=24, acc=28, acc2=32, wa=36, wb=38, m=39,
                 K=40, V=76, DQ=112)
        R["WO"] = 80 + 40
        R["X"] = 152
        self.vmax = max(self.vmax, 160)
        return R

    def waddr_F(self, R):
        a = self.a
        t0 = R["t"]; t2 = t0 + 2; vA = R["wa"]; vB = R["wb"]
        self.rho(t0, t2)
        a("s_movk_i32 s%d, 9216" % S_T1)
        a("v_mul_lo_u32 v%d, v%d, s%d" % (vA, t0, S_T1))
        a("v_and_b32 v%d, 7, v0" % t2)
        a("v_lshl_add_u32 v%d, v%d, 4, v%d" % (vA, t2, vA))
        a("s_and_b32 s%d, s%d, 1" % (S_T0, S_U))
        a("s_mul_i32 s%d, s%d, 288" % (S_T0, S_T0))
        a("s_lshl_b32 s%d, s%d, 5" % (S_T2, S_T9))
        a("s_add_u32 s%d, s%d, s%d" % (S_T0, S_T0, S_T2))
        a("s_mul_i32 s%d, s%d, 9216" % (S_T0, S_T0))
        a("s_lshr_b32 s%d, s%d, 1" % (S_T2, S_U))
        a("s_lshl_b32 s%d, s%d, 7" % (S_T2, S_T2))
        a("s_add_u32 s%d, s%d, s%d" % (S_T0, S_T0, S_T2))
        a("s_add_u32 s%d, s%d, s%d" % (S_BASE, P_WG, S_T0))
        a("s_addc_u32 s%d, s%d, 0" % (S_BASE + 1, P_WG + 1))
        a("s_add_u32 s%d, s%d, s%d" % (S_STR, P_WU, S_T0))
        a("s_addc_u32 s%d, s%d, 0" % (S_STR + 1, P_WU + 1))
        a("v_mul_u32_u24 v%d, 1152, v%d" % (vB, t0))
        a("v_lshl_add_u32 v%d, v%d, 4, v%d" % (vB, t2, vB))
        a("s_mul_i32 s%d, s%d, %d" % (S_T0, S_U, 32 * 1152))
        a("s_lshl_b32 s%d, s%d, 7" % (S_T1, S_T9))
        a("s_add_u32 s%d, s%d, s%d" % (S_T0, S_T0, S_T1))
        a("s_add_u32 s%d, s%d, s%d" % (S_BASE2, P_WD, S_T0))
        a("s_addc_u32 s%d, s%d, 0" % (S_BASE2 + 1, P_WD + 1))
    def waddr_WO(self, R):
        a = self.a
        t0 = R["t"]; t2 = t0 + 2; vB = R["wb"]
        self.rho(t0, t2)
        a("v_mul_u32_u24 v%d, 1152, v%d" % (vB, t0))
        a("v_and_b32 v%d, 7, v0" % t2)
        a("v_lshl_add_u32 v%d, v%d, 4, v%d" % (vB, t2, vB))
        a("s_mul_i32 s%d, s%d, %d" % (S_T0, S_U, 64 * 1152))
        a("s_lshl_b32 s%d, s%d, 7" % (S_T1, S_T9))
        a("s_add_u32 s%d, s%d, s%d" % (S_T0, S_T0, S_T1))
        a("s_add_u32 s%d, s%d, s%d" % (S_BASE2, P_WO, S_T0))
        a("s_addc_u32 s%d, s%d, 0" % (S_BASE2 + 1, P_WO + 1))

    def kv_list(self, R, n, Kb, Vb):
        a = self.a; L = []
        for nm, srd, off, base in (("K", SRD_K, R["koff"], Kb), ("V", SRD_V, R["voff"], Vb)):
            for t in range(n):
                so = (S_KV, S_KV2, S_KV3)[t // 4]
                L.append(("%s%d" % (nm, t), lambda t=t, so=so, nm=nm, srd=srd, off=off, base=base: a.vmem("buffer_load_dwordx4 %s, v%d, s[%d:%d], s%d offen offset:%d nt" % (vr(base + 4 * t, 4), off, srd, srd + 3, so, (t % 4) * 1024), "%s%d" % (nm, t))))
        return L
    def wo_list(self, R):
        a = self.a; L = []
        for t in range(8):
            def f(t=t):
                a.vmem("global_load_dwordx4 %s, v%d, s[%d:%d] nt" % (vr(R["WO"] + 4 * t, 4), R["wb"], S_BASE2, S_BASE2 + 1), "W%d" % t)
                if t < 7:
                    a("s_add_u32 s%d, s%d, 9216" % (S_BASE2, S_BASE2))
                    a("s_addc_u32 s%d, s%d, 0" % (S_BASE2 + 1, S_BASE2 + 1))
            L.append(("W%d" % t, f))
        return L
    def f_list(self, R):
        a = self.a; L = []
        for t in range(4):
            for m, base in ((0, S_BASE), (1, S_STR)):
                def f(t=t, m=m, base=base):
                    a.vmem("global_load_dwordx4 %s, v%d, s[%d:%d] nt" % (vr(R["K"] + 16 * m + 4 * t, 4), R["wa"], base, base + 1), "W%d" % (4 * m + t))
                    if t < 3:
                        a("s_add_u32 s%d, s%d, 73728" % (base, base))
                        a("s_addc_u32 s%d, s%d, 0" % (base + 1, base + 1))
                L.append(("W%d" % (4 * m + t), f))
        for t in range(4):
            def f(t=t):
                a.vmem("global_load_dwordx4 %s, v%d, s[%d:%d] nt" % (vr(R["V"] + 16 + 4 * t, 4), R["wb"], S_BASE2, S_BASE2 + 1), "D%d" % t)
                if t < 3:
                    a("s_add_u32 s%d, s%d, 9216" % (S_BASE2, S_BASE2))
                    a("s_addc_u32 s%d, s%d, 0" % (S_BASE2 + 1, S_BASE2 + 1))
            L.append(("D%d" % t, f))
        return L
    def run_list(self, lst, nxt, upto, win):
        a = self.a
        while nxt < upto:
            j = nxt - (win(nxt) if callable(win) else win)
            if j >= 0 and not a.vm_done(lst[j][0]): a.wait_vm(lst[j][0])
            lst[nxt][1](); nxt += 1
        return nxt

    def base_init(self, R):
        a = self.a
        a("s_mov_b64 s[%d:%d], s[%d:%d]" % (S_BASE, S_BASE + 1, P_WG, P_WG + 1))
        a("s_mov_b64 s[%d:%d], s[%d:%d]" % (S_STR, S_STR + 1, P_WU, P_WU + 1))
        a("s_mov_b64 s[%d:%d], s[%d:%d]" % (S_BASE2, S_BASE2 + 1, P_WD, P_WD + 1))
        a("v_mov_b32 v%d, 0" % R["wa"])
        a("v_mov_b32 v%d, 0" % R["wb"])

    def role_branch(self, fF, fWO, fRED=None):
        a = self.a
        LW = self.lab(); LJ = self.lab(); LR = self.lab()
        h0 = list(a.hist); vm0 = list(a.vm)
        a("s_cmp_lt_u32 s2, 144")
        a("s_cbranch_scc0 %s" % LW)
        fF()
        a("s_branch %s" % LJ)
        a.label(LW); a.hist = list(h0); a.vm = list(vm0)
        a("s_cmp_lt_u32 s2, 208")
        a("s_cbranch_scc0 %s" % LJ)
        fWO()
        a.label(LJ)
        a.vm = list(vm0)
        a("s_nop 1")

    def aux_pf(self):
        a = self.a
        a.label("L_auxpf", keep=False)
        if self.chfirst: a("s_barrier")
        if self.codepf:
            a("s_cmp_ge_u32 s2, 248")
            a("s_cbranch_scc0 L_aux")
            a("s_getpc_b64 s[%d:%d]" % (S_BASE, S_BASE + 1))
            a.label("L_pc")
            a("s_add_u32 s%d, s%d, L_att2-L_pc" % (S_BASE, S_BASE))
            a("s_addc_u32 s%d, s%d, 0" % (S_BASE + 1, S_BASE + 1))
            a("v_lshlrev_b32 v4, 4, v0")
            for i in range(self.codepf):
                a("global_load_dwordx4 %s, v4, s[%d:%d] offset:%d" % (vr(40 + 4 * (i % 16), 4), S_BASE, S_BASE + 1, (i % 4) * 1024))
                if i % 4 == 3 and i + 1 < self.codepf:
                    a("s_add_u32 s%d, s%d, 4096" % (S_BASE, S_BASE))
                    a("s_addc_u32 s%d, s%d, 0" % (S_BASE + 1, S_BASE + 1))
        a("s_branch L_aux")

    def att1(self):
        a = self.a
        R = self.sregs()
        a.vm = []
        t = R["t"]
        a("v_bfe_u32 v%d, v0, 2, 2" % t)
        a("v_lshlrev_b32 v%d, 8, v%d" % (t, t))
        a("v_lshrrev_b32 v%d, 4, v0" % (t + 1))
        a("v_lshl_add_u32 v%d, v%d, 6, v%d" % (t, t + 1, t))
        a("v_and_b32 v%d, 3, v0" % (t + 1))
        a("v_lshl_add_u32 v%d, v%d, 4, v%d" % (R["koff"], t + 1, t))
        a("v_lshlrev_b32 v%d, 4, v0" % R["voff"])
        a("s_and_b32 s%d, s%d, 1" % (S_T0, S_J))
        a("s_add_u32 s%d, s%d, s%d" % (S_T0, S_T0, S_J))
        a("s_add_u32 s%d, s%d, 6" % (S_T0, S_T0))
        a("s_bfe_u32 s%d, s%d, 0x30001" % (S_T0, S_T0))
        a("s_add_u32 s%d, s%d, 7" % (S_T1, S_T0))
        a("s_and_b32 s%d, s%d, 7" % (S_T1, S_T1))
        a("s_mov_b32 s%d, 0" % S_T2)
        a("s_cmp_lt_u32 s%d, s%d" % (S_T0, S_X))
        a("s_addc_u32 s%d, s%d, 0" % (S_T2, S_T2))
        a("s_cmp_lt_u32 s%d, s%d" % (S_T1, S_X))
        a("s_addc_u32 s%d, s%d, 0" % (S_T2, S_T2))
        a("s_lshl_b32 s%d, s%d, 1" % (S_T2, S_T2))
        a("s_sub_u32 s%d, s2, 144" % S_T0)
        a("s_cmp_lt_u32 s%d, 64" % S_T0)
        a("s_cselect_b32 s%d, 5, 9" % S_T3)
        a("s_cselect_b32 s%d, s%d, 0" % (S_T0, S_S))
        a("s_and_b32 s%d, s%d, 1" % (S_T0, S_T0))
        a("s_add_u32 s%d, s%d, s%d" % (S_T2, S_T2, S_T0))
        a("s_lshl_b32 s%d, s%d, 15" % (S_T2, S_T2))
        a("s_mul_i32 s%d, s%d, %d" % (S_KV, S_S, 288 * 256))
        a("s_sub_u32 s%d, s%d, s%d" % (S_KV, S_KV, S_T2))
        a("s_lshl_b32 s%d, s%d, 24" % (S_T0, S_J))
        a("s_add_u32 s%d, s%d, s%d" % (S_KV, S_KV, S_T0))
        a("s_mul_i32 s%d, s%d, s%d" % (S_T0, S_WAVE, S_T3))
        a("s_lshl_b32 s%d, s%d, 10" % (S_T0, S_T0))
        a("s_add_u32 s%d, s%d, s%d" % (S_KV, S_KV, S_T0))
        a("s_add_u32 s%d, s%d, 0xF00000" % (S_KV, S_KV))
        a("s_add_u32 s%d, s%d, 4096" % (S_KV2, S_KV))
        a("s_add_u32 s%d, s%d, 8192" % (S_KV3, S_KV))
        a("s_mov_b32 s%d, s%d" % (S_T9, S_WAVE))
        a("s_waitcnt lgkmcnt(0)")
        self.srd(SRD_K, P_K, 0x10000000)
        self.srd(SRD_V, P_V, 0x10000000)
        lst = self.kv_list(R, 9, R["K"], R["V"])
        a("s_barrier")
        self.run_list(lst, 0, self.wk, self.wk)
        a("s_branch L_att2")
        self.att_vm = list(a.vm)

    def att2(self):
        a = self.a
        R = self.sregs()
        t = R["t"]
        a.label("L_att2", keep=False)
        self.unit_ids()
        self.srd(SRD_WS, P_WS, WS_SIZE)
        self.load_tag()
        self.masks(R["M"], t, t + 1)
        self.base_init(R)
        LW = self.lab(); LJ = self.lab()
        a("s_cmp_lt_u32 s2, 144")
        a("s_cbranch_scc0 %s" % LW)
        self.waddr_F(R)
        a("s_branch %s" % LJ)
        a.label(LW)
        a("s_cmp_lt_u32 s2, 208")
        a("s_cbranch_scc0 %s" % LJ)
        self.waddr_WO(R)
        a.label(LJ)
        a("s_nop 1")
        a("v_bfe_u32 v%d, v0, 3, 1" % t)
        a("v_lshlrev_b32 v%d, 5, v%d" % (t + 3, t))
        a("s_lshl_b32 s%d, s%d, 2" % (S_T0, S_WAVE))
        a("v_add_u32 v%d, s%d, v%d" % (t + 3, S_T0, t + 3))
        a("v_lshlrev_b32 v%d, 8, v%d" % (t, t))
        a("v_lshrrev_b32 v%d, 4, v0" % (t + 1))
        a("v_lshl_add_u32 v%d, v%d, 6, v%d" % (t, t + 1, t))
        a("v_and_b32 v%d, 3, v0" % (t + 1))
        a("v_lshl_add_u32 v%d, v%d, 4, v%d" % (t + 2, t + 1, t))
        a("s_lshl_b32 s%d, s%d, 10" % (S_T0, S_WAVE))
        a("v_add_u32 v%d, s%d, v%d" % (t + 4, S_T0, R["voff"]))
        a("v_lshrrev_b32 v%d, 3, v0" % t)
        a("s_and_b32 s%d, s%d, 1" % (S_T0, S_WAVE))
        a("s_lshl_b32 s%d, s%d, 5" % (S_A2, S_T0))
        a("v_lshlrev_b32 v%d, 2, v%d" % (t + 6, t))
        a("v_add_u32 v%d, s%d, v%d" % (t + 6, S_A2, t + 6))
        a("v_lshlrev_b32 v%d, 10, v%d" % (t, t))
        a("v_and_b32 v%d, 7, v0" % (t + 1))
        a("v_lshlrev_b32 v%d, 4, v%d" % (t + 7, t + 1))
        a("v_add_u32 v%d, v%d, v%d" % (t, t, t + 7))
        a("s_lshl_b32 s%d, s%d, 7" % (S_T1, S_WAVE))
        a("v_add_u32 v%d, s%d, v%d" % (t + 5, S_T1, t))
        a("s_lshl_b32 s%d, s%d, 1" % (S_T1, S_T0))
        a("s_lshr_b32 s%d, s%d, 2" % (S_T2, S_WAVE))
        a("s_add_u32 s%d, s%d, s%d" % (S_T1, S_T1, S_T2))
        a("s_lshl_b32 s%d, s%d, 2" % (S_T2, S_J))
        a("s_add_u32 s%d, s%d, s%d" % (S_T1, S_T1, S_T2))
        a("s_mul_i32 s%d, s%d, 6144" % (S_T1, S_T1))
        a("s_mul_i32 s%d, s%d, 384" % (S_T2, S_S))
        a("s_add_u32 s%d, s%d, s%d" % (S_T1, S_T1, S_T2))
        a("s_add_u32 s%d, s%d, 0x%x" % (S_A0, S_T1, WS_H2))
        a("s_bfe_u32 s%d, s%d, 0x10001" % (S_T2, S_WAVE))
        a("s_lshl_b32 s%d, s%d, 7" % (S_T2, S_T2))
        a("s_add_u32 s%d, s%d, s%d" % (S_A1, S_A0, S_T2))
        a("s_mov_b32 s%d, 0x%x" % (S_C1, f2u(C1)))
        a("v_mov_b32 v%d, s%d" % (R["wa"] + 1, S_A2))
        self.finish_tag(R["T"])
        a("s_sub_u32 s%d, s2, 144" % S_T0)
        a("s_cmp_lt_u32 s%d, 64" % S_T0)
        a("s_cbranch_scc1 L_att_WO")
        h0 = list(a.hist)
        a.vm = list(self.att_vm)
        self.att_main(R, 9, R["K"], R["V"], R["DQ"], None)
        LJ = self.lab()
        a("s_cmp_lt_u32 s2, 144")
        a("s_cbranch_scc0 %s" % LJ)
        self.run_list(self.f_list(R), 0, self.fpre, 99)
        a.label(LJ)
        a("s_branch L_att_pub")
        a.hist = list(h0)
        a.label("L_att_WO")
        a.vm = list(self.att_vm)
        self.att_main(R, 5, 40, 60, 80, self.wo_list(R))
        a.label("L_att_pub", keep=False)
        self.TS(5)
        self.att_pub(R)
        a("s_cmp_lt_u32 s2, 144")
        a("s_cbranch_scc1 L_F_tail")
        a("s_cmp_lt_u32 s2, 208")
        a("s_cbranch_scc1 L_WO_tail")
        h0 = list(a.hist)
        a.label("L_RED_tail"); a.vm = []
        self.red_tail(R)
        a.hist = list(h0)
        a.label("L_WO_tail"); a("s_nop 1"); a.vm = ["W%d" % i for i in range(8)]
        self.wo_tail(R)
        a.hist = list(h0)
        a.label("L_F_tail"); a("s_nop 1")
        wl = self.f_list(R)
        a.vm = [wl[i][0] for i in range(self.fpre)]
        a("s_barrier")
        self.f_tail(R, wl, self.fpre)

    def att_main(self, R, n, Kb, Vb, DQ, wl):
        a = self.a; t = R["t"]
        lst = self.kv_list(R, n, Kb, Vb) + (wl or [])
        self.run_list(lst, self.wk, len(lst), lambda k: self.wk if k < n else self.wv)
        self.TS(2)
        a("v_mov_b32 v%d, 0" % t)
        self.lds_wait(0, 1, t, t + 1)
        self.TS(3)
        a("ds_read_b128 %s, v%d offset:%d" % (vr(R["qB"], 4), t + 2, L_QT))
        if not a.vm_done("K%d" % (n - 1)): a.wait_vm("K%d" % (n - 1))
        a("s_waitcnt lgkmcnt(0)")
        for i in range(n): self.mfma(DQ + 4 * i, Kb + 4 * i, R["qB"], None)
        S = [DQ + 4 * i for i in range(n)]
        for step in range(4):
            for i in range(n):
                if step == 0: a("v_mov_b32_dpp v%d, v%d quad_perm:[0,0,0,0] row_mask:0xf bank_mask:0xf" % (S[i], S[i]))
                else: a("v_add_f32_dpp v%d, v%d, v%d quad_perm:[%d,%d,%d,%d] row_mask:0xf bank_mask:0xf" % (S[i], S[i] + step, S[i], step, step, step, step))
        m = R["m"]
        rest = list(S)
        a("v_max3_f32 v%d, v%d, v%d, v%d" % (m, rest[0], rest[1], rest[2])); rest = rest[3:]
        if len(rest) >= 3:
            a("v_max3_f32 v%d, v%d, v%d, v%d" % (t, rest[0], rest[1], rest[2])); rest = rest[3:] + [t]
        while len(rest) >= 2:
            a("v_max3_f32 v%d, v%d, v%d, v%d" % (m, m, rest[0], rest[1])); rest = rest[2:]
        if rest: a("v_max_f32 v%d, v%d, v%d" % (m, m, rest[0]))
        self.rowsum([m], [t], "v_max_f32")
        a("v_mul_f32 v%d, s%d, v%d" % (m, S_C1, m))
        a("v_and_b32 v%d, 0xfffff000, v%d" % (m, m))
        for i in range(n): a("v_fma_f32 v%d, v%d, s%d, -v%d" % (S[i], S[i], S_C1, m))
        for i in range(n): a("v_exp_f32 v%d, v%d" % (S[i], S[i]))
        for i in range(n): a("v_cvt_pk_bf16_f32 v%d, v%d, v%d" % (S[i] + 1, S[i], S[i]))
        self.TS(4)
        waits = [(lambda tag="V%d" % tt: (None if a.vm_done(tag) else a.wait_vm(tag))) for tt in range(n)]
        self.gemv(R["acc"], R["acc2"], [Vb + 4 * i for i in range(n)], [S[i] + 1 for i in range(n)], R["M"], [R["B"], R["B2"], R["qB"]], waits, final=False)
        cur = list(S)
        while len(cur) > 1:
            nx = []
            for i in range(0, len(cur) - 1, 2):
                a("v_add_f32 v%d, v%d, v%d" % (cur[i], cur[i], cur[i + 1])); nx.append(cur[i])
            if len(cur) % 2: nx.append(cur[-1])
            cur = nx
        self.rowred([S[0]], [t])
        for j in range(4): a("v_add_f32 v%d, v%d, v%d" % (R["acc"] + j, R["acc"] + j, R["acc2"] + j))
        a("ds_write_b128 v%d, %s offset:%d" % (t + 4, vr(R["acc"], 4), L_OP))
        self.exec_set(0x101, 0)
        a("ds_write_b32 v%d, v%d offset:%d" % (t + 3, m, L_MX))
        a("ds_write_b32 v%d, v%d offset:%d" % (t + 3, S[0], L_LS))
        self.exec_set(1, 0)
        a("v_mov_b32 v%d, 0" % t)
        a("v_mov_b32 v%d, 1" % (t + 1))
        a("ds_add_u32 v%d, v%d offset:%d" % (t, t + 1, L_FL + 4))
        self.exec_all()

    def att_pub(self, R):
        a = self.a; t = R["t"]; m = R["m"]
        a("v_mov_b32 v%d, 0" % t)
        self.lds_wait(4, 8, t, t + 1)
        X = R["X"]; B = R["B"]; B2 = R["B2"]
        a("ds_read_b128 %s, v%d offset:%d" % (vr(X, 4), t + 5, L_OP))
        a("ds_read_b32 v%d, v%d offset:%d" % (X + 5, t + 6, L_MX))
        a("ds_read_b32 v%d, v%d offset:%d" % (X + 4, t + 6, L_LS))
        a("ds_read_b128 %s, v%d offset:%d" % (vr(B, 4), R["wa"] + 1, L_MX))
        a("ds_read_b128 %s, v%d offset:%d" % (vr(B2, 4), R["wa"] + 1, L_MX + 16))
        a("s_waitcnt lgkmcnt(0)")
        a("v_max3_f32 v%d, v%d, v%d, v%d" % (m, B, B + 1, B + 2))
        a("v_max3_f32 v%d, v%d, v%d, v%d" % (t + 1, B + 3, B2, B2 + 1))
        a("v_max3_f32 v%d, v%d, v%d, v%d" % (m, m, B2 + 2, B2 + 3))
        a("v_max_f32 v%d, v%d, v%d" % (m, m, t + 1))
        a("v_sub_f32 v%d, v%d, v%d" % (X + 5, X + 5, m))
        a("v_exp_f32 v%d, v%d" % (X + 5, X + 5))
        regs = [X, X + 1, X + 2, X + 3, X + 4]
        for r in regs: a("v_mul_f32 v%d, v%d, v%d" % (r, r, X + 5))
        self.dppstep(regs, "row_ror:8")
        self.rowred(regs, [B, B + 1, B + 2, B + 3, B2])
        self.tag4(X, R["T"])
        self.exec_set(0xFF, 0)
        a("buffer_store_dwordx4 %s, v%d, s[%d:%d], s%d offen sc1" % (vr(X, 4), t + 7, SRD_WS, SRD_WS + 3, S_A1))
        Lml = self.lab()
        a("s_bitcmp1_b32 s%d, 1" % S_WAVE)
        a("s_cbranch_scc1 %s" % Lml)
        a("v_bfi_b32 v%d, s%d, v%d, v%d" % (B2, S_MASK, R["T"], m))
        a("v_bfi_b32 v%d, s%d, v%d, v%d" % (B2 + 1, S_MASK, R["T"], X + 4))
        self.exec_set(1, 0)
        a("buffer_store_dwordx2 %s, v%d, s[%d:%d], s%d offen offset:256 sc1" % (vr(B2, 2), t + 7, SRD_WS, SRD_WS + 3, S_A0))
        a.label(Lml)
        self.exec_all()
        self.TS(1)

    def out_addr(self, R, role):
        a = self.a; t = R["t"]
        RS = 18432 if role == "F" else 8192
        a("v_and_b32 v%d, 7, v0" % (t + 4))
        a("v_bfe_u32 v%d, v0, 4, 1" % (t + 3))
        a("v_mul_u32_u24 v%d, %d, v%d" % (t + 6, RS, t + 3))
        a("v_lshl_add_u32 v%d, v%d, 4, v%d" % (t + 6, t + 4, t + 6))
        a("s_mul_i32 s%d, s%d, %d" % (S_A0, S_T9, 2 * RS))
        a("s_lshl_b32 s%d, s%d, 7" % (S_T2, S_U))
        a("s_add_u32 s%d, s%d, s%d" % (S_A0, S_A0, S_T2))
        a("s_add_u32 s%d, s%d, 0x%x" % (S_A0, S_A0, WS_H4 if role == "F" else WS_H3))

    def wo_tail(self, R):
        a = self.a; t = R["t"]; X = R["X"]
        self.rho(t, t + 1)
        a("v_lshlrev_b32 v%d, 5, v%d" % (t + 1, t))
        self.out_addr(R, "WO")
        if not a.vm_done("W7") and "W7" in a.vm: a.wait_vm("W7")
        self.TS(6)
        self.barrier()
        self.TS(7)
        a("ds_read_b128 %s, v%d offset:%d" % (vr(X, 4), t + 1, L_T3))
        a("ds_read_b128 %s, v%d offset:%d" % (vr(X + 4, 4), t + 1, L_T3 + 16))
        a("s_waitcnt lgkmcnt(0)")
        self.gemv(R["acc"], R["acc2"], [R["WO"] + 4 * i for i in range(8)], [X + i for i in range(8)], R["M"], [R["B"], R["B2"], R["qB"]])
        self.merge(R["acc"], R["B"], R["B2"])
        self.tag4(R["acc"], R["T"])
        self.exec_set(0x00FF00FF, 0)
        a.vmem("buffer_store_dwordx4 %s, v%d, s[%d:%d], s%d offen sc1" % (vr(R["acc"], 4), t + 6, SRD_WS, SRD_WS + 3, S_A0), "st")
        self.TS(9)
        self.end(t)

    def f_tail(self, R, wl, wn):
        a = self.a; t = R["t"]; X = R["X"]; V = R["V"]; acc = R["acc"]; acc2 = R["acc2"]
        M = R["M"]; B = R["B"]; B2 = R["B2"]; B3 = R["qB"]
        wn = self.run_list(wl, wn, 8 if self.dlate else len(wl), self.ww)
        self.rho(t, t + 1)
        a("v_mul_u32_u24 v%d, 288, v%d" % (t + 1, t))
        a("s_and_b32 s%d, s%d, 1" % (S_T0, S_U))
        a("s_mul_i32 s%d, s%d, 144" % (S_T0, S_T0))
        a("s_lshl_b32 s%d, s%d, 4" % (S_T1, S_T9))
        a("s_add_u32 s%d, s%d, s%d" % (S_T0, S_T0, S_T1))
        a("v_add_u32 v%d, s%d, v%d" % (t + 1, S_T0, t + 1))
        self.out_addr(R, "F")
        a("v_lshlrev_b32 v%d, 4, v%d" % (t + 2, t))
        a("v_lshlrev_b32 v%d, 7, v%d" % (t + 5, t + 3))
        a("v_lshl_add_u32 v%d, v%d, 4, v%d" % (t + 5, t + 4, t + 5))
        a("s_lshl_b32 s%d, s%d, 9" % (S_T2, S_T9))
        a("v_add_u32 v%d, s%d, v%d" % (t + 5, S_T2, t + 5))
        for j in range(4): a("v_and_b32 v%d, 0x3f803f80, v%d" % (B + j, M + j))
        for tt in range(4):
            for m in range(2):
                tag = "W%d" % (4 * m + tt)
                if not a.vm_done(tag): a.wait_vm(tag)
                d = acc if m == 0 else acc2
                self.mfma(d, R["K"] + 16 * m + 4 * tt, B, None if tt == 0 else d)
        self.merge(acc, B2)
        self.merge(acc2, B3)
        self.exec_set(0x00FF00FF, 0)
        a("ds_write_b128 v%d, %s offset:%d" % (t + 5, vr(acc, 4), L_CS))
        a("ds_write_b128 v%d, %s offset:%d" % (t + 5, vr(acc2, 4), L_CS + 256))
        self.exec_all()
        self.TS(6)
        self.barrier()
        self.barrier()
        self.TS(7)
        a("ds_read_b128 %s, v%d offset:%d" % (vr(X, 4), t + 1, L_T2))
        if self.dlate: wn = self.run_list(wl, wn, len(wl), 99)
        a("s_waitcnt lgkmcnt(0)")
        Bs = [B, B2, B3, V]
        self.bbuild(Bs[0], X, M); self.bbuild(Bs[1], X + 1, M)
        for tt in range(4):
            if tt + 2 < 4: self.bbuild(Bs[tt + 2], X + tt + 2, M)
            self.mfma(acc, R["K"] + 4 * tt, Bs[tt], None if tt == 0 else acc)
            self.mfma(acc2, R["K"] + 16 + 4 * tt, Bs[tt], None if tt == 0 else acc2)
        self.merge(acc, V + 4)
        self.merge(acc2, V + 8)
        self.exec_set(0x00FF00FF, 0)
        a("ds_write_b128 v%d, %s offset:%d" % (t + 5, vr(acc, 4), L_GP))
        a("ds_write_b128 v%d, %s offset:%d" % (t + 5, vr(acc2, 4), L_GP + 256))
        self.exec_all()
        self.barrier()
        self.barrier()
        self.TS(8)
        a("ds_read_b128 %s, v%d offset:%d" % (vr(X, 4), t + 2, L_T4))
        a.wait_vm_all()
        a("s_waitcnt lgkmcnt(0)")
        self.gemv(acc, acc2, [R["V"] + 16 + 4 * i for i in range(4)], [X + i for i in range(4)], M, [B, B2, B3])
        self.merge(acc, B, B2)
        self.tag4(acc, R["T"])
        self.exec_set(0x00FF00FF, 0)
        a.vmem("buffer_store_dwordx4 %s, v%d, s[%d:%d], s%d offen sc1" % (vr(acc, 4), t + 6, SRD_WS, SRD_WS + 3, S_A0), "st")
        self.TS(9)
        self.end(t)

    def red_tail(self, R):
        a = self.a; t = R["t"]; X = R["X"]; G = R["K"]
        Lx = self.lab()
        a("s_cmp_lt_u32 s%d, %d" % (S_U, 64 + 18))
        a("s_cbranch_scc0 %s" % Lx)
        a("s_sub_u32 s%d, s%d, 64" % (S_U, S_U))
        a("v_lshlrev_b32 v%d, 4, v0" % t)
        a("s_lshl_b32 s%d, s%d, 10" % (S_T0, S_T9))
        a("v_add_u32 v%d, s%d, v%d" % (t + 1, S_T0, t))
        L8 = self.lab()
        a("s_cmp_lt_u32 s%d, 8" % S_T9)
        a("s_cbranch_scc0 %s" % L8)
        a("s_lshl_b32 s%d, s%d, 13" % (S_T1, S_U))
        a("s_add_u32 s%d, s%d, s%d" % (S_T1, S_T1, S_T0))
        a("s_add_u32 s%d, s%d, 0x%x" % (S_T1, S_T1, WS_H3))
        a.vm = []
        L = self.poll_begin()
        a("buffer_load_dwordx4 %s, v%d, s[%d:%d], s%d offen sc1" % (vr(G, 4), t, SRD_WS, SRD_WS + 3, S_T1))
        a("s_waitcnt vmcnt(0)")
        self.check4(t + 2, G, R["T"], t + 3, True)
        self.poll_end(L, t + 2)
        a("ds_write_b128 v%d, %s offset:%d" % (t + 1, vr(G, 4), L_OP))
        a.label(L8)
        self.TS(6)
        self.barrier()
        a("s_mul_i32 s%d, s%d, 18432" % (S_T1, S_U))
        a("s_lshl_b32 s%d, s%d, 11" % (S_T0, S_T9))
        a("s_add_u32 s%d, s%d, s%d" % (S_T1, S_T1, S_T0))
        a("s_add_u32 s%d, s%d, 0x%x" % (S_T1, S_T1, WS_H4))
        self.barrier()
        L = self.poll_begin()
        a("buffer_load_dwordx4 %s, v%d, s[%d:%d], s%d offen sc1" % (vr(G, 4), t, SRD_WS, SRD_WS + 3, S_T1))
        a("buffer_load_dwordx4 %s, v%d, s[%d:%d], s%d offen offset:1024 sc1" % (vr(G + 4, 4), t, SRD_WS, SRD_WS + 3, S_T1))
        a("s_waitcnt vmcnt(0)")
        self.check4(t + 2, G, R["T"], t + 3, True)
        self.check4(t + 2, G + 4, R["T"], t + 3, False)
        self.poll_end(L, t + 2)
        for j in range(4): a("v_add_f32 v%d, v%d, v%d" % (G + j, G + j, G + 4 + j))
        a("ds_write_b128 v%d, %s offset:%d" % (t + 1, vr(G, 4), L_OP))
        self.TS(7)
        self.barrier()
        a.label(Lx)
        self.end(t)

    def aux(self):
        a = self.a
        R = self.sregs()
        t = R["t"]
        a.label("L_aux", keep=False)
        a.vm = []
        a("s_mov_b32 s%d, 8" % S_T9)
        a("v_lshlrev_b32 v%d, 4, v0" % t)
        for j in range(4): a("v_mov_b32 v%d, 0" % (R["B"] + j))
        self.exec_set(0xFFFFFFFF, 0)
        for base in (L_GP, L_CS):
            a("ds_write_b128 v%d, %s offset:%d" % (t, vr(R["B"], 4), base + 9 * 512))
        self.exec_all()
        self.unit_ids()
        a("s_waitcnt lgkmcnt(0)")
        self.srd(SRD_WS, P_WS, WS_SIZE)
        self.load_tag()
        a("s_waitcnt vmcnt(0)")
        self.masks(R["M"], t, t + 1)
        self.base_init(R)
        a("s_cmp_lt_u32 s2, 144")
        a("s_cbranch_scc1 L_aux_F")
        a("s_cmp_lt_u32 s2, 208")
        a("s_cbranch_scc1 L_aux_WO")
        hist0 = list(a.hist)
        self.finish_tag(R["T"])
        a("s_branch L_RED_tail")
        a.hist = list(hist0); a.vm = []
        a.label("L_aux_WO")
        self.waddr_WO(R)
        self.run_list(self.wo_list(R), 0, 8, self.auxw)
        self.finish_tag(R["T"])
        a("s_branch L_WO_tail")
        a.hist = list(hist0); a.vm = []
        a.label("L_aux_F")
        self.waddr_F(R)
        self.finish_tag(R["T"])
        a("v_mov_b32 v%d, 0" % t)
        self.lds_wait(4, 8, t, t + 1)
        self.run_list(self.f_list(R), 0, self.fpre, 99)
        a("s_branch L_F_tail")

    def ch_prologue(self):
        a = self.a
        a.vm = []
        T = 1; t = 2
        M = 16; B = 20; B2 = 24; B3 = 28; acc = 32; acc2 = 36
        XR = 40; XF = 48; W = 64; XD = 136
        self.vmax = max(self.vmax, 156)
        if self.prio: a("s_setprio 3")
        a("v_lshlrev_b32 v%d, 5, v0" % t)
        self.rho(t + 1, t + 2)
        a("v_lshlrev_b32 v%d, 13, v%d" % (t + 1, t + 1))
        a("v_and_b32 v%d, 7, v0" % (t + 2))
        a("v_lshl_add_u32 v%d, v%d, 4, v%d" % (t + 1, t + 2, t + 1))
        a("s_and_b32 s%d, s%d, 3" % (S_A1, S_S))
        a("s_lshr_b32 s%d, s%d, 2" % (S_A2, S_S))
        a("s_mul_i32 s%d, s%d, %d" % (S_T0, S_A1, 144 * 8192))
        a("s_lshl_b32 s%d, s%d, 9" % (S_T1, S_J))
        a("s_add_u32 s%d, s%d, s%d" % (S_T0, S_T0, S_T1))
        a("s_lshl_b32 s%d, s%d, 7" % (S_T1, S_A2))
        a("s_add_u32 s%d, s%d, s%d" % (S_A0, S_T0, S_T1))
        a("s_waitcnt lgkmcnt(0)")
        self.srd(SRD_X, P_X, 1152)
        if not self.noq:
            self.srd(SRD_K, P_WQ, 576 * 8192)
            a("s_mov_b32 s%d, 65536" % S_T1)
            a.vmem("buffer_load_dwordx4 %s, v%d, s[%d:%d], 0 offen" % (vr(XR, 4), t, SRD_X, SRD_X + 3), "x0")
            a.vmem("buffer_load_dwordx4 %s, v%d, s[%d:%d], 0 offen offset:16" % (vr(XR + 4, 4), t, SRD_X, SRD_X + 3), "x1")
            for i in range(18):
                a.vmem("buffer_load_dwordx4 %s, v%d, s[%d:%d], s%d offen nt" % (vr(W + 4 * i, 4), t + 1, SRD_K, SRD_K + 3, S_A0), "w%d" % i)
                if i < 17: a("s_add_u32 s%d, s%d, s%d" % (S_A0, S_A0, S_T1))
        a("v_mov_b32 v%d, 0" % (t + 2))
        a("v_mov_b32 v%d, 0" % (t + 3))
        a("v_mov_b32 v%d, 0" % (t + 4))
        a("ds_write_b64 v%d, %s offset:%d" % (t + 4, vr(t + 2, 2), L_FL))
        self.barrier()
        self.ch_vm = list(a.vm)

    def ch_q(self):
        a = self.a
        T = 1; t = 2
        M = 16; B = 20; B2 = 24; B3 = 28; acc = 32; acc2 = 36
        XR = 40; XF = 48; W = 64; XD = 136
        self.unit_ids()
        self.TS(1)
        self.srd(SRD_WS, P_WS, WS_SIZE)
        self.load_tag()
        self.masks(M, t + 2, t + 3)
        if not self.noq:
            a("s_mul_i32 s%d, s%d, 9" % (S_T0, S_A1))
            a("v_subrev_u32 v%d, s%d, v0" % (t + 8, S_T0))
            a("v_cmp_gt_u32 vcc, 9, v%d" % (t + 8))
            a("s_mov_b64 s[%d:%d], vcc" % (S_STR, S_STR + 1))
            a("v_lshlrev_b32 v%d, 3, v%d" % (t + 8, t + 8))
            self.rho(t + 9, t + 3)
            a("v_mul_u32_u24 v%d, 80, v%d" % (t + 9, t + 9))
            a("v_bfe_u32 v%d, v0, 4, 1" % (t + 10))
            a("v_and_b32 v%d, 7, v0" % (t + 3))
            a("v_lshl_add_u32 v%d, v%d, 3, v%d" % (t + 10, t + 10, t + 3))
            a("v_lshlrev_b32 v%d, 4, v%d" % (t + 10, t + 10))
            a("s_lshl_b32 s%d, s%d, 12" % (S_T0, S_J))
            a("s_add_u32 s%d, s%d, 0x%x" % (S_A0, S_T0, WS_H1))
            a("s_lshl_b32 s%d, s%d, 10" % (S_T1, S_A1))
            a("s_lshl_b32 s%d, s%d, 8" % (S_T2, S_A2))
            a("s_add_u32 s%d, s%d, s%d" % (S_T1, S_T1, S_T2))
            a("s_add_u32 s%d, s%d, s%d" % (S_A1, S_T1, S_A0))
            a("v_lshlrev_b32 v%d, 4, v0" % (t + 11))
            a("v_lshrrev_b32 v%d, 3, v0" % (t + 12))
            a("v_lshlrev_b32 v%d, 5, v%d" % (t + 12, t + 12))
            a("v_add_u32 v%d, v%d, v%d" % (t + 12, t + 12, t + 3))
            a("v_lshlrev_b32 v%d, 1, v%d" % (t + 12, t + 12))
            self.finish_tag(T)
            a.wait_vm("x1")
            for i in range(8):
                a("v_lshlrev_b32 v%d, 16, v%d" % (XF + 2 * i, XR + i))
                a("v_and_b32 v%d, 0xffff0000, v%d" % (XF + 2 * i + 1, XR + i))
            self.ln_fast(list(range(XF, XF + 16)), t + 2, 36)
            a("s_mov_b64 exec, s[%d:%d]" % (S_STR, S_STR + 1))
            for e in range(8):
                y = XD + 2 * e
                a("v_cvt_pk_bf16_f32 v%d, v%d, v%d" % (y, XF + e, XF + e))
                a("v_cvt_pk_bf16_f32 v%d, v%d, v%d" % (y + 1, XF + e + 8, XF + e + 8))
                a("ds_write_b64 v%d, %s offset:%d" % (t + 8, vr(y, 2), L_T1 + e * 80))
            self.exec_all()
            a("s_waitcnt lgkmcnt(0)")
            for i in range(5):
                a("ds_read_b128 %s, v%d offset:%d" % (vr(XD + 4 * i, 4), t + 9, L_T1 + 16 * i))
            a("s_waitcnt lgkmcnt(0)")
            waits = [(lambda i=i: (None if a.vm_done("w%d" % i) else a.wait_vm("w%d" % i))) for i in range(18)]
            self.gemv(acc, acc2, [W + 4 * i for i in range(18)], [XD + i for i in range(18)], M, [B, B2, B3], waits)
            self.merge(acc, B, B2)
            self.tag4(acc, T)
            self.exec_set(0x00FF00FF, 0)
            a.vmem("buffer_store_dwordx4 %s, v%d, s[%d:%d], s%d offen sc1" % (vr(acc, 4), t + 10, SRD_WS, SRD_WS + 3, S_A1), "st")
            self.exec_all()
            self.TS(2)
            G = W; G2 = W + 16
            a.vm = []
            def issue(g):
                for k in range(4):
                    a("buffer_load_dwordx4 %s, v%d, s[%d:%d], s%d offen offset:%d sc1" % (vr(g + 4 * k, 4), t + 11, SRD_WS, SRD_WS + 3, S_A0, 1024 * k))
            Lp = self.lab("Lp"); LokA = self.lab("Lok"); LokB = self.lab("Lok"); Ldone = self.lab("Lok")
            a("s_mov_b32 s%d, 0" % S_CNT)
            if self.presleep: a("s_sleep %d" % self.presleep)
            issue(G)
            a.label(Lp)
            if self.pollsleep: a("s_sleep %d" % self.pollsleep)
            issue(G2)
            a("s_waitcnt vmcnt(4)")
            for k in range(4): self.check4(t + 3, G + 4 * k, T, t + 4, k == 0)
            a("v_and_b32 v%d, s%d, v%d" % (t + 3, S_MASK, t + 3))
            a("v_cmp_ne_u32 vcc, 0, v%d" % (t + 3))
            a("s_cbranch_vccz %s" % LokA)
            issue(G)
            a("s_waitcnt vmcnt(4)")
            for k in range(4): self.check4(t + 3, G2 + 4 * k, T, t + 4, k == 0)
            a("v_and_b32 v%d, s%d, v%d" % (t + 3, S_MASK, t + 3))
            a("v_cmp_ne_u32 vcc, 0, v%d" % (t + 3))
            a("s_cbranch_vccz %s" % LokB)
            a("s_add_u32 s%d, s%d, 1" % (S_CNT, S_CNT))
            a("s_cmp_lt_u32 s%d, %d" % (S_CNT, POLL_MAX))
            a("s_cbranch_scc1 %s" % Lp)
            a.label(LokB)
            a("s_waitcnt vmcnt(0)")
            for j in range(16): a("v_mov_b32 v%d, v%d" % (G + j, G2 + j))
            a.label(LokA)
            for j in range(4):
                a("v_add_f32 v%d, v%d, v%d" % (G + j, G + j, G + 4 + j))
                a("v_add_f32 v%d, v%d, v%d" % (G + 8 + j, G + 8 + j, G + 12 + j))
            for j in range(4): a("v_add_f32 v%d, v%d, v%d" % (G + j, G + j, G + 8 + j))
            for j in range(4): a("v_cvt_pk_bf16_f32 v%d, v%d, v%d" % (G + j, G + j, G + j))
            for j in range(4): a("ds_write_b16 v%d, v%d offset:%d" % (t + 12, G + j, L_QT + 16 * j))
        else:
            self.finish_tag(T)
        a("v_mov_b32 v%d, 1" % (t + 3))
        a("v_mov_b32 v%d, 0" % (t + 4))
        a("s_waitcnt lgkmcnt(0)")
        a("ds_write_b32 v%d, v%d offset:%d" % (t + 4, t + 3, L_FL))
        self.TS(3)
        a("s_branch L_ch_roles")

    def ch_roles(self):
        a = self.a
        T = 1; t = 2
        M = 16; B = 20; B2 = 24; B3 = 28; acc = 32; acc2 = 36
        XR = 40; XF = 48; W = 64; XD = 136
        a.label("L_ch_roles", keep=False)
        a.vm = []
        a("s_waitcnt vmcnt(0)")
        a("s_cmp_lt_u32 s2, 144")
        a("s_cbranch_scc1 L_ch_F")
        a("s_cmp_lt_u32 s2, 208")
        a("s_cbranch_scc1 L_ch_WO")
        hist0 = list(a.hist)
        Lx = self.lab()
        XV = XD; HF = XD + 4; G8 = W
        a("s_cmp_lt_u32 s%d, %d" % (S_U, 64 + 18))
        a("s_cbranch_scc1 L_ch_R18")
        self.end(t)
        a.label("L_ch_R18")
        a("s_sub_u32 s%d, s%d, 64" % (S_U, S_U))
        a("v_and_b32 v%d, 7, v0" % (t + 2))
        a("v_lshlrev_b32 v%d, 1, v%d" % (t + 3, t + 2))
        a("s_lshl_b32 s%d, s%d, 6" % (S_A2, S_U))
        for j in range(4):
            a("buffer_load_ushort v%d, v%d, s[%d:%d], s%d offen offset:%d" % (XV + j, t + 3, SRD_X, SRD_X + 3, S_A2, 16 * j))
        a("v_lshlrev_b32 v%d, 4, v0" % (t + 4))
        a("v_lshlrev_b32 v%d, 4, v%d" % (t + 5, t + 2))
        a("s_lshl_b32 s%d, s%d, 7" % (S_A0, S_U))
        a("s_add_u32 s%d, s%d, 0x%x" % (S_A0, S_A0, WS_HH))
        a("s_waitcnt vmcnt(0)")
        for j in range(4): a("v_lshlrev_b32 v%d, 16, v%d" % (XV + j, XV + j))
        self.srd(SRD_X, P_OUT, 1152)
        self.barrier()
        self.TS(5)
        def sum_parts(n):
            for w in range(n): a("ds_read_b128 %s, v%d offset:%d" % (vr(G8 + 4 * w, 4), t + 4, L_OP + 1024 * w))
            a("s_waitcnt lgkmcnt(0)")
            pairs = [(0, 1), (2, 3), (4, 5), (6, 7), (0, 2), (4, 6), (0, 4)] + ([(0, 8)] if n == 9 else [])
            for (x, y) in pairs:
                for j in range(4): a("v_add_f32 v%d, v%d, v%d" % (G8 + 4 * x + j, G8 + 4 * x + j, G8 + 4 * y + j))
            regs = [G8, G8 + 1, G8 + 2, G8 + 3]
            self.dppstep(regs, "row_ror:8")
            self.rowred(regs, [B, B + 1, B + 2, B + 3])
        sum_parts(8)
        for j in range(4): self.rbf16(G8 + j)
        for j in range(4): a("v_add_f32 v%d, v%d, v%d" % (HF + j, G8 + j, XV + j))
        for j in range(4): self.rbf16(HF + j)
        for j in range(4): a("v_or_b32 v%d, s%d, v%d" % (XV + j, S_TAG, HF + j))
        self.exec_set(0xFF, 0)
        a("buffer_store_dwordx4 %s, v%d, s[%d:%d], s%d offen sc1" % (vr(XV, 4), t + 5, SRD_WS, SRD_WS + 3, S_A0))
        self.exec_all()
        self.TS(6)
        self.barrier()
        self.barrier()
        self.TS(7)
        sum_parts(9)
        for j in range(4): self.rbf16(G8 + j)
        for j in range(4): a("v_add_f32 v%d, v%d, v%d" % (G8 + j, G8 + j, HF + j))
        if self.offset_out:
            for j in range(4): a("v_add_f32 v%d, 0x%x, v%d" % (G8 + j, f2u(self.offset_out), G8 + j))
        for j in range(4): a("v_cvt_pk_bf16_f32 v%d, v%d, v%d" % (G8 + j, G8 + j, G8 + j))
        self.exec_set(0xFF, 0)
        for j in range(4):
            a("buffer_store_short v%d, v%d, s[%d:%d], s%d offen offset:%d" % (G8 + j, t + 3, SRD_X, SRD_X + 3, S_A2, 16 * j))
        Le = self.lab()
        a("s_cmp_eq_u32 s%d, 0" % S_U)
        a("s_cbranch_scc0 %s" % Le)
        self.exec_set(1, 0)
        a("v_mov_b32 v%d, s%d" % (t + 2, S_TAG))
        a("v_mov_b32 v%d, 0" % (t + 6))
        a("buffer_store_dword v%d, v%d, s[%d:%d], 0 offen offset:%d" % (t + 2, t + 6, SRD_WS, SRD_WS + 3, WS_EPOCH))
        a.label(Le)
        self.TS(8)
        self.end(t + 6)
        a.hist = list(hist0)
        a.label("L_ch_WO")
        a("v_lshrrev_b32 v%d, 4, v0" % (t + 3))
        a("v_mul_u32_u24 v%d, 384, v%d" % (t + 3, t + 3))
        a("v_and_b32 v%d, 15, v0" % (t + 2))
        a("v_lshl_add_u32 v%d, v%d, 4, v%d" % (t + 2, t + 2, t + 3))
        a("s_mul_i32 s%d, s%d, 6144" % (S_T0, S_U))
        a("s_add_u32 s%d, s%d, 0x%x" % (S_T0, S_T0, WS_H2))
        a("s_add_u32 s%d, s%d, 3072" % (S_T1, S_T0))
        a("v_and_b32 v%d, 7, v0" % (t + 8))
        a("v_lshlrev_b32 v%d, 5, v%d" % (t + 8, t + 8))
        a("v_bfe_u32 v%d, v0, 3, 1" % (t + 9))
        a("v_lshl_add_u32 v%d, v%d, 4, v%d" % (t + 8, t + 9, t + 8))
        a("v_mov_b32 v%d, 0" % (t + 9))
        self.lds_wait(4, 8, t + 9, t + 10)
        self.TS(4)
        O = W; ML = W + 16
        L = self.poll_begin()
        for q in range(4):
            a("buffer_load_dwordx4 %s, v%d, s[%d:%d], s%d offen offset:%d sc1" % (vr(O + 4 * q, 4), t + 2, SRD_WS, SRD_WS + 3, S_T0 if q < 2 else S_T1, 1536 * (q % 2)))
        for q in range(4):
            a("buffer_load_dwordx2 %s, v%d, s[%d:%d], s%d offen offset:%d sc1" % (vr(ML + 2 * q, 2), t + 3, SRD_WS, SRD_WS + 3, S_T0 if q < 2 else S_T1, 1536 * (q % 2) + 256))
        a("s_waitcnt vmcnt(0)")
        for k in range(6): self.check4(t + 4, O + 4 * k, T, t + 5, k == 0)
        self.poll_end(L, t + 4)
        self.TS(6)
        mg = t + 4
        Mq = [ML + 2 * q for q in range(4)]
        for q in range(4): a("v_and_b32 v%d, 0xfffff000, v%d" % (Mq[q], Mq[q]))
        a("v_max3_f32 v%d, v%d, v%d, v%d" % (mg, Mq[0], Mq[1], Mq[2]))
        a("v_max_f32 v%d, v%d, v%d" % (mg, mg, Mq[3]))
        self.rowsum([mg], [t + 5], "v_max_f32")
        for q in range(4): a("v_sub_f32 v%d, v%d, v%d" % (Mq[q], Mq[q], mg))
        for q in range(4): a("v_exp_f32 v%d, v%d" % (Mq[q], Mq[q]))
        Ls = t + 6
        a("v_mul_f32 v%d, v%d, v%d" % (Ls, Mq[0], Mq[0] + 1))
        for j in range(4): a("v_mul_f32 v%d, v%d, v%d" % (acc + j, O + j, Mq[0]))
        for q in range(1, 4):
            a("v_fmac_f32 v%d, v%d, v%d" % (Ls, Mq[q], Mq[q] + 1))
            for j in range(4): a("v_fmac_f32 v%d, v%d, v%d" % (acc + j, O + 4 * q + j, Mq[q]))
        self.rowred([Ls, acc, acc + 1, acc + 2, acc + 3], [t + 7, B, B + 1, B + 2, B + 3])
        a("v_rcp_f32 v%d, v%d" % (Ls, Ls))
        for j in range(4): a("v_mul_f32 v%d, v%d, v%d" % (acc + j, acc + j, Ls))
        for j in range(4): a("v_cvt_pk_bf16_f32 v%d, v%d, v%d" % (acc + j, acc + j, acc + j))
        self.exec_set(0xFFFF, 0)
        a("ds_write_b128 v%d, %s offset:%d" % (t + 8, vr(acc, 4), L_T3))
        self.exec_all()
        self.TS(7)
        self.barrier()
        self.end(t)
        a.hist = list(hist0)
        a.label("L_ch_F")
        H = W
        a("v_lshlrev_b32 v%d, 4, v0" % (t + 2))
        a("s_mov_b32 s%d, 0x%x" % (S_T0, WS_HH))
        for j in range(4): a("v_mov_b32 v%d, 0" % (H + 8 + j))
        a("v_and_b32 v%d, 7, v0" % (t + 8))
        a("v_mul_u32_u24 v%d, 288, v%d" % (t + 8, t + 8))
        a("v_lshrrev_b32 v%d, 3, v0" % (t + 9))
        a("v_lshl_add_u32 v%d, v%d, 4, v%d" % (t + 8, t + 9, t + 8))
        a("s_mov_b32 s%d, 0x03020302" % S_T1)
        a("v_lshrrev_b32 v%d, 5, v0" % (t + 10))
        a("v_mul_u32_u24 v%d, 2560, v%d" % (t + 10, t + 10))
        a("v_and_b32 v%d, 31, v0" % (t + 9))
        a("v_lshl_add_u32 v%d, v%d, 4, v%d" % (t + 10, t + 9, t + 10))
        a("v_and_b32 v%d, 7, v0" % (t + 12))
        a("v_lshlrev_b32 v%d, 4, v%d" % (t + 12, t + 12))
        a("v_bfe_u32 v%d, v0, 4, 1" % (t + 11))
        a("v_lshl_add_u32 v%d, v%d, 7, v%d" % (t + 11, t + 11, t + 12))
        a("s_lshl_b32 s%d, s%d, 8" % (S_A0, S_U))
        a("s_xor_b32 s%d, s%d, 256" % (S_A2, S_A0))
        a("s_add_u32 s%d, s%d, 0x%x" % (S_A0, S_A0, WS_HX))
        a("s_add_u32 s%d, s%d, 0x%x" % (S_A2, S_A2, WS_HX))
        a("s_mov_b32 s%d, 0xFF00FF00" % S_A1)
        a("s_mov_b32 s%d, 0x000000FF" % S_KV)
        a("s_bitcmp1_b32 s%d, 0" % S_U)
        a("s_cselect_b32 s%d, 0x00FF00FF, s%d" % (S_A1, S_A1))
        a("s_cselect_b32 s%d, 0x0000FF00, s%d" % (S_KV, S_KV))
        a("buffer_load_dwordx4 %s, v%d, s[%d:%d], s%d offen sc1" % (vr(W + 40, 4), t + 11, SRD_WS, SRD_WS + 3, S_A0))
        a("s_barrier")
        self.barrier()
        a("s_waitcnt vmcnt(0)")
        CSv = W + 56
        G = W + 32
        for k in range(5): a("ds_read_b128 %s, v%d offset:%d" % (vr(G + 4 * k, 4), t + 10, L_CS + 512 * k))
        a("s_waitcnt lgkmcnt(0)")
        for (x, y) in ((0, 1), (2, 3), (0, 2), (0, 4)):
            for j in range(4): a("v_add_f32 v%d, v%d, v%d" % (G + 4 * x + j, G + 4 * x + j, G + 4 * y + j))
        for j in range(4): a("v_mov_b32 v%d, v%d" % (CSv + j, G + j))
        self.TS(4)
        L = self.poll_begin()
        a("buffer_load_dwordx4 %s, v%d, s[%d:%d], s%d offen sc1" % (vr(H, 4), t + 2, SRD_WS, SRD_WS + 3, S_T0))
        a("buffer_load_dwordx4 %s, v%d, s[%d:%d], s%d offen offset:1024 sc1" % (vr(H + 4, 4), t + 2, SRD_WS, SRD_WS + 3, S_T0))
        self.exec_set(0xFFFF, 0)
        a("buffer_load_dwordx4 %s, v%d, s[%d:%d], s%d offen offset:2048 sc1" % (vr(H + 8, 4), t + 2, SRD_WS, SRD_WS + 3, S_T0))
        self.exec_all()
        a("s_waitcnt vmcnt(0)")
        self.check4(t + 3, H, T, t + 4, True)
        self.check4(t + 3, H + 4, T, t + 4, False)
        self.exec_set(0xFFFF, 0)
        self.check4(t + 3, H + 8, T, t + 4, False)
        self.exec_all()
        self.poll_end(L, t + 3)
        self.TS(6)
        D = W + 12
        for j in range(12): a("v_perm_b32 v%d, v%d, v%d, s%d" % (D + j, H + j, H + j, S_T1))
        a("ds_write_b128 v%d, %s offset:%d" % (t + 8, vr(D, 4), L_T2))
        a("ds_write_b128 v%d, %s offset:%d" % (t + 8, vr(D + 4, 4), L_T2 + 128))
        self.exec_set(0xFFFF, 0)
        a("ds_write_b128 v%d, %s offset:%d" % (t + 8, vr(D + 8, 4), L_T2 + 256))
        self.exec_all()
        self.TS(7)
        self.barrier()
        a("s_setprio 0")
        for j in range(12): a("v_and_b32 v%d, 0xffff0000, v%d" % (H + j, H + j))
        self.stats1(list(range(H, H + 12)), t + 3)
        a("v_add_f32 v%d, 0x%x, v%d" % (t + 4, f2u(1e-5), t + 4))
        a("v_rcp_f32 v%d, v%d" % (t + 4, t + 4))
        a("s_setprio 3")
        self.barrier()
        G = W + 32;
        for k in range(5): a("ds_read_b128 %s, v%d offset:%d" % (vr(G + 4 * k, 4), t + 10, L_GP + 512 * k))
        a("s_waitcnt lgkmcnt(0)")
        for (x, y) in ((0, 1), (2, 3), (0, 2), (0, 4)):
            for j in range(4): a("v_add_f32 v%d, v%d, v%d" % (G + 4 * x + j, G + 4 * x + j, G + 4 * y + j))
        for j in range(4): a("v_fma_f32 v%d, -v%d, v%d, v%d" % (G + j, t + 3, CSv + j, G + j))
        for j in range(4): a("v_permlane32_swap_b32 v%d, v%d" % (G + j, G + 4 + j))
        for j in range(4): a("v_add_f32 v%d, v%d, v%d" % (G + j, G + j, G + 4 + j))
        for j in range(4): a("v_bfi_b32 v%d, s%d, v%d, v%d" % (G + 4 + j, S_MASK, T, G + j))
        a("s_mov_b32 exec_lo, s%d" % S_A1)
        a("s_mov_b32 exec_hi, 0")
        a("buffer_store_dwordx4 %s, v%d, s[%d:%d], s%d offen sc1" % (vr(G + 4, 4), t + 11, SRD_WS, SRD_WS + 3, S_A2))
        self.exec_all()
        self.TS(8)
        P = G + 8
        L = self.poll_begin()
        a("buffer_load_dwordx4 %s, v%d, s[%d:%d], s%d offen sc1" % (vr(P, 4), t + 11, SRD_WS, SRD_WS + 3, S_A0))
        a("s_waitcnt vmcnt(0)")
        self.check4(t + 5, P, T, t + 6, True)
        self.poll_end(L, t + 5)
        self.TS(9)
        for j in range(4): a("v_add_f32 v%d, v%d, v%d" % (G + j, G + j, P + j))
        for j in range(4): a("v_permlane16_swap_b32 v%d, v%d" % (G + j, G + 4 + j))
        for j in range(4): a("v_mul_f32 v%d, v%d, v%d" % (G + j, G + j, G + 4 + j))
        for j in range(4): a("v_mul_f32 v%d, v%d, v%d" % (G + j, G + j, t + 4))
        for j in range(4): a("v_cvt_pk_bf16_f32 v%d, v%d, v%d" % (G + j, G + j, G + j))
        a("s_mov_b32 exec_lo, s%d" % S_KV)
        a("s_mov_b32 exec_hi, 0")
        a("ds_write_b128 v%d, %s offset:%d" % (t + 12, vr(G, 4), L_T4))
        self.exec_all()
        self.barrier()
        self.end(t)

    def stats(self, regs, t, valid_lanes=None, third_masked=False):
        a = self.a
        s1 = t; s2 = t + 1; x = t + 2
        n = len(regs)
        a("v_add_f32 v%d, v%d, v%d" % (s1, regs[0], regs[1]))
        a("v_add_f32 v%d, v%d, v%d" % (s2, regs[2], regs[3]))
        for i in range(4, n, 2):
            a("v_add_f32 v%d, v%d, v%d" % (s1, s1, regs[i]))
            a("v_add_f32 v%d, v%d, v%d" % (s2, s2, regs[i + 1]))
        a("v_add_f32 v%d, v%d, v%d" % (s1, s1, s2))
        self.allsum([s1], [x])
        a("s_mov_b32 s%d, 0x%x" % (S_T3, f2u(1.0 / 576)))
        a("v_mul_f32 v%d, s%d, v%d" % (s1, S_T3, s1))
        a("v_cmp_gt_u32 vcc, %d, v0" % (valid_lanes if valid_lanes is not None else 16))
        a("v_cndmask_b32 v%d, 0, v%d, vcc" % (t + 3, s1))
        mv = [t + 3] * n if valid_lanes is not None else [s1] * 8 + [t + 3] * 4
        a("v_sub_f32 v%d, v%d, v%d" % (x, regs[0], mv[0]))
        a("v_mul_f32 v%d, v%d, v%d" % (s2, x, x))
        for i in range(1, n):
            xx = x if i % 2 == 0 else t + 4
            a("v_sub_f32 v%d, v%d, v%d" % (xx, regs[i], mv[i]))
            a("v_fmac_f32 v%d, v%d, v%d" % (s2, xx, xx))
        self.allsum([s2], [x])
        a("v_mul_f32 v%d, s%d, v%d" % (s2, S_T3, s2))

    def stats1(self, regs, t):
        a = self.a
        n = len(regs)
        s1 = t; s2 = t + 1
        a("v_readfirstlane_b32 s%d, v%d" % (S_T3, regs[0]))
        a("v_cmp_gt_u32 vcc, 16, v0")
        a("v_mov_b32 v%d, s%d" % (t + 2, S_T3))
        a("v_cndmask_b32 v%d, 0, v%d, vcc" % (t + 2, t + 2))
        for r in regs[:8]: a("v_subrev_f32 v%d, s%d, v%d" % (r, S_T3, r))
        for r in regs[8:]: a("v_sub_f32 v%d, v%d, v%d" % (r, r, t + 2))
        a("v_add_f32 v%d, v%d, v%d" % (s1, regs[0], regs[1]))
        a("v_mul_f32 v%d, v%d, v%d" % (s2, regs[0], regs[0]))
        a("v_add_f32 v%d, v%d, v%d" % (t + 3, regs[2], regs[3]))
        a("v_mul_f32 v%d, v%d, v%d" % (t + 4, regs[2], regs[2]))
        a("v_fmac_f32 v%d, v%d, v%d" % (s2, regs[1], regs[1]))
        a("v_fmac_f32 v%d, v%d, v%d" % (t + 4, regs[3], regs[3]))
        for i in range(4, n, 2):
            a("v_add_f32 v%d, v%d, v%d" % (s1, s1, regs[i]))
            a("v_fmac_f32 v%d, v%d, v%d" % (s2, regs[i], regs[i]))
            a("v_add_f32 v%d, v%d, v%d" % (t + 3, t + 3, regs[i + 1]))
            a("v_fmac_f32 v%d, v%d, v%d" % (t + 4, regs[i + 1], regs[i + 1]))
        a("v_add_f32 v%d, v%d, v%d" % (s1, s1, t + 3))
        a("v_add_f32 v%d, v%d, v%d" % (s2, s2, t + 4))
        self.allsum([s1, s2], [t + 3, t + 4])
        a("s_mov_b32 s%d, 0x%x" % (S_T2, f2u(1.0 / 576)))
        a("v_mul_f32 v%d, s%d, v%d" % (s1, S_T2, s1))
        a("v_mul_f32 v%d, s%d, v%d" % (s2, S_T2, s2))
        a("v_fma_f32 v%d, -v%d, v%d, v%d" % (s2, s1, s1, s2))
        a("v_max_f32 v%d, 0, v%d" % (s2, s2))
        a("v_add_f32 v%d, s%d, v%d" % (s1, S_T3, s1))

    def ln_fast(self, regs, t, valid_lanes):
        a = self.a
        n = len(regs)
        s1 = t; s2 = t + 1
        a("v_readfirstlane_b32 s%d, v%d" % (S_T3, regs[0]))
        a("v_cmp_gt_u32 vcc, %d, v0" % valid_lanes)
        a("v_mov_b32 v%d, s%d" % (t + 2, S_T3))
        a("v_cndmask_b32 v%d, 0, v%d, vcc" % (t + 2, t + 2))
        for r in regs: a("v_sub_f32 v%d, v%d, v%d" % (r, r, t + 2))
        a("v_add_f32 v%d, v%d, v%d" % (s1, regs[0], regs[1]))
        a("v_mul_f32 v%d, v%d, v%d" % (s2, regs[0], regs[0]))
        a("v_fmac_f32 v%d, v%d, v%d" % (s2, regs[1], regs[1]))
        a("v_add_f32 v%d, v%d, v%d" % (t + 3, regs[2], regs[3]))
        a("v_mul_f32 v%d, v%d, v%d" % (t + 4, regs[2], regs[2]))
        a("v_fmac_f32 v%d, v%d, v%d" % (t + 4, regs[3], regs[3]))
        for i in range(4, n, 2):
            a("v_add_f32 v%d, v%d, v%d" % (s1, s1, regs[i]))
            a("v_fmac_f32 v%d, v%d, v%d" % (s2, regs[i], regs[i]))
            a("v_add_f32 v%d, v%d, v%d" % (t + 3, t + 3, regs[i + 1]))
            a("v_fmac_f32 v%d, v%d, v%d" % (t + 4, regs[i + 1], regs[i + 1]))
        a("v_add_f32 v%d, v%d, v%d" % (s1, s1, t + 3))
        a("v_add_f32 v%d, v%d, v%d" % (s2, s2, t + 4))
        self.allsum([s1, s2], [t + 3, t + 4])
        a("s_mov_b32 s%d, 0x%x" % (S_T3, f2u(1.0 / 576)))
        a("v_mul_f32 v%d, s%d, v%d" % (s1, S_T3, s1))
        a("v_mul_f32 v%d, s%d, v%d" % (s2, S_T3, s2))
        a("v_fma_f32 v%d, -v%d, v%d, v%d" % (s2, s1, s1, s2))
        a("v_max_f32 v%d, 0, v%d" % (s2, s2))
        a("v_add_f32 v%d, 0x%x, v%d" % (s2, f2u(1e-5), s2))
        a("v_rsq_f32 v%d, v%d" % (s2, s2))
        a("v_mul_f32 v%d, v%d, v%d" % (s1, s1, s2))
        for r in regs: a("v_fma_f32 v%d, v%d, v%d, -v%d" % (r, r, s2, s1))

if __name__ == "__main__":
    import argparse
    p = argparse.ArgumentParser()
    p.add_argument("-o", default="sequential_preLN__sliding_block_cached__glu_gated_bilinear__decode.s")
    p.add_argument("--ts", action="store_true")
    p.add_argument("--wk", type=int, default=3)
    p.add_argument("--wkwo", type=int, default=5)
    p.add_argument("--ww", type=int, default=3)
    p.add_argument("--fpre", type=int, default=1)
    p.add_argument("--noq", action="store_true")
    p.add_argument("--noprio", action="store_true")
    p.add_argument("--offset", type=float, default=0.0)
    p.add_argument("--knat", action="store_true")
    p.add_argument("--wlate", action="store_true")
    p.add_argument("--pollsleep", type=int, default=0)
    p.add_argument("--presleep", type=int, default=20)
    p.add_argument("--nochfirst", action="store_true")
    p.add_argument("--wearly", action="store_true")
    p.add_argument("--wopre", type=int, default=0)
    p.add_argument("--womid", type=int, default=4)
    p.add_argument("--codepf", type=int, default=12)
    p.add_argument("--wv", type=int, default=4)
    p.add_argument("--vstart", type=int, default=8)
    p.add_argument("--wo1", type=int, default=5)
    p.add_argument("--auxw", type=int, default=2)
    p.add_argument("--nodlate", action="store_true")
    args = p.parse_args()
    g = Gen(ts=args.ts, wk=args.wk, wkwo=args.wkwo, ww=args.ww, fpre=args.fpre, noq=args.noq, prio=not args.noprio, offset_out=args.offset, knat=args.knat, wlate=not args.wearly, pollsleep=args.pollsleep, chfirst=not args.nochfirst, presleep=args.presleep, wopre=args.wopre, womid=args.womid, codepf=args.codepf, wv=args.wv, vstart=args.vstart, wo1=args.wo1, auxw=args.auxw, dlate=not args.nodlate)
    txt = g.build()
    hdr = open("sequential_preLN__sliding_block_cached__glu_gated_bilinear__decode.s.ref").read().split("; Override launch")[0]
    open(args.o, "w").write(hdr + txt)
    print("wrote", args.o, "auto nops:", g.a.nops, "vmax", g.vmax)
```
